```python
import torch

def _softmax(x, axis=-1):
    return torch.softmax(x, dim=axis)
def _gelu(x):
    return torch.nn.functional.gelu(x, approximate="tanh")
def _silu(x):
    return torch.nn.functional.silu(x)
def _sigmoid(x):
    return torch.sigmoid(x)
def _layernorm(x, axis=-1, eps=1e-5):
    m = x.mean(dim=axis, keepdim=True)
    v = x.var(dim=axis, keepdim=True, unbiased=False)
    return (x - m) / torch.sqrt(v + eps)
def _scatter_add(tgt, idx, src, axis=0):
    return tgt.clone().index_add_(axis, idx, src)
def _segment_sum(src, seg, n):
    out = torch.zeros((n,) + src.shape[1:], dtype=src.dtype)
    return out.index_add_(0, seg, src)
def _pad(x, pw):
    flat = tuple(v for pair in reversed(pw) for v in pair)
    return torch.nn.functional.pad(x, flat)

kernel_name = 'parallel_sum__grouped_kv_mqa__glu_gated_geglu__prompt'

def setup_inputs():

    _w = (lambda a: (lambda t: t.to(torch.bfloat16) if t.is_floating_point() else t)(torch.as_tensor(a)))
    def _A_setup():
        B, S, D, H = 1, 2048, 512, 32
        Dh = D // H
        return {
            "x": _w((lambda *s: torch.randn(*s, dtype=torch.bfloat16) * 0.05)(B, S, D)),
            "wq": _w((lambda *s: torch.randn(*s, dtype=torch.bfloat16) * 0.05)(D, H * Dh)),
            "wk": _w((lambda *s: torch.randn(*s, dtype=torch.bfloat16) * 0.05)(D, Dh)),
            "wv": _w((lambda *s: torch.randn(*s, dtype=torch.bfloat16) * 0.05)(D, Dh)),
            "wo": _w((lambda *s: torch.randn(*s, dtype=torch.bfloat16) * 0.05)(H * Dh, D)),
        }
    _A_in = _A_setup()

    def _B_setup():
        B, S, Dm, Df = 1, 2048, 512, 1376
        return {
            "x": _w((lambda *s: torch.randn(*s, dtype=torch.bfloat16) * 0.05)(B, S, Dm)),
            "w_gate": _w((lambda *s: torch.randn(*s, dtype=torch.bfloat16) * 0.4)(Dm, Df) * (Dm ** -0.5)),
            "w_up": _w((lambda *s: torch.randn(*s, dtype=torch.bfloat16) * 0.4)(Dm, Df) * (Dm ** -0.5)),
            "w_down": _w((lambda *s: torch.randn(*s, dtype=torch.bfloat16) * 0.4)(Df, Dm) * (Df ** -0.5)),
        }
    _B_in = _B_setup()

    return {
        "A_x": _A_in["x"],
        "A_wq": _A_in["wq"],
        "A_wk": _A_in["wk"],
        "A_wv": _A_in["wv"],
        "A_wo": _A_in["wo"],
        "B_x": _B_in["x"],
        "B_w_gate": _B_in["w_gate"],
        "B_w_up": _B_in["w_up"],
        "B_w_down": _B_in["w_down"],
    }

def reference(A_x, A_wq, A_wk, A_wv, A_wo, B_x, B_w_gate, B_w_up, B_w_down):
    def _A_ref(x, wq, wk, wv, wo):
        B, S, D = x.shape
        H = 32
        Dh = D // H
        q = (lambda x, *d: x.permute(*d))((x @ wq).reshape(B, S, H, Dh), 0, 2, 1, 3)
        k = x @ wk
        v = x @ wv
        scores = torch.einsum("bhqd,bkd->bhqk", q, k) * (Dh ** -0.5)
        p = _softmax(scores, axis=-1)
        o = torch.einsum("bhqk,bkd->bhqd", p, v)
        return (lambda x, *d: x.permute(*d))(o, 0, 2, 1, 3).reshape(B, S, H * Dh) @ wo

    def _B_ref(x, w_gate, w_up, w_down):
        g = torch.einsum("bsd,df->bsf", x, w_gate)
        u = torch.einsum("bsd,df->bsf", x, w_up)
        h = _gelu(g) * u
        return torch.einsum("bsf,fd->bsd", h, w_down)

    x = A_x
    xn = _layernorm(x, axis=-1)
    return x + _A_ref(xn, A_wq, A_wk, A_wv, A_wo) + _B_ref(xn, B_w_gate, B_w_up, B_w_down)
```

```python
import struct
XN=0; QF=0x200000; KV=0x400000; KMAX=0x420000; WGU=0x500000; W2=0x800000; OH=0xA00000; WS_SIZE=0x1200000
def f2u(f): return struct.unpack('<I',struct.pack('<f',f))[0]
class Asm:
    def __init__(s,n): s.l=[]; s.n=n
    def e(s,t): s.l.append("    "+t)
    def label(s,t): s.l.append(t+":")
    def text(s): return "\n".join(s.l)+"\n"
def srd(a,d,b,n):
    a.e(f"s_mov_b32 s{d}, s{b}"); a.e(f"s_mov_b32 s{d+1}, s{b+1}"); a.e(f"s_mov_b32 s{d+2}, {n}"); a.e(f"s_mov_b32 s{d+3}, 0x00020000")
def allred(a,r,t,op,steps):
    for s in steps:
        a.e("s_nop 1")
        if s==1: a.e(f"{op}_dpp v{r}, v{r}, v{r} quad_perm:[1,0,3,2] row_mask:0xf bank_mask:0xf")
        elif s==2: a.e(f"{op}_dpp v{r}, v{r}, v{r} quad_perm:[2,3,0,1] row_mask:0xf bank_mask:0xf")
        elif s==4:
            a.e(f"v_mov_b32_dpp v{t}, v{r} row_ror:4 row_mask:0xf bank_mask:0xf"); a.e(f"{op} v{r}, v{r}, v{t}")
        elif s==8:
            a.e(f"v_mov_b32_dpp v{t}, v{r} row_ror:8 row_mask:0xf bank_mask:0xf"); a.e(f"{op} v{r}, v{r}, v{t}")
        else:
            a.e(f"v_mov_b32 v{t}, v{r}"); a.e("s_nop 1"); a.e(f"v_permlane{s}_swap_b32 v{r}, v{t}"); a.e("s_nop 1"); a.e(f"{op} v{r}, v{r}, v{t}")
def sumsq(a,src,d,t):
    for i in range(4):
        a.e(f"v_lshlrev_b32 v{t}, 16, v{src+i}")
        a.e(f"v_mul_f32 v{d}, v{t}, v{t}" if i==0 else f"v_fmac_f32 v{d}, v{t}, v{t}")
        a.e(f"v_and_b32 v{t}, 0xffff0000, v{src+i}"); a.e(f"v_fmac_f32 v{d}, v{t}, v{t}")
```

```python
from common import *
def k1():
    a=Asm('k1')
    e=a.e
    e("s_cmp_ge_u32 s2, 256"); e("s_cbranch_scc1 k1_end")
    e("s_load_dwordx8 s[4:11], s[0:1], 0")
    e("s_load_dwordx2 s[12:13], s[0:1], 32")
    e("s_load_dwordx4 s[16:19], s[0:1], 48")
    e("s_load_dwordx2 s[20:21], s[0:1], 64")
    e("s_load_dwordx2 s[22:23], s[0:1], 88")
    e("v_lshrrev_b32 v1, 6, v0"); e("v_and_b32 v0, 63, v0"); e("s_nop 0")
    e("v_readfirstlane_b32 s3, v1")
    e("s_lshr_b32 s24, s2, 3"); e("s_and_b32 s25, s2, 7")
    e("v_and_b32 v1, 3, v0"); e("v_lshrrev_b32 v2, 2, v0")
    e("s_lshl_b32 s26, s24, 6"); e("s_lshl_b32 s27, s3, 2"); e("s_add_u32 s26, s26, s27"); e("s_lshl_b32 s26, s26, 10")
    e("v_lshlrev_b32 v3, 10, v1"); e("v_lshl_add_u32 v3, v2, 4, v3")
    e("s_waitcnt lgkmcnt(0)")
    srd(a,28,4,2097152); srd(a,32,6,524288); srd(a,36,8,16384); srd(a,40,10,16384); srd(a,44,22,WS_SIZE)
    for i in range(4): e(f"buffer_load_dwordx4 v[{16+4*i}:{19+4*i}], v3, s[28:31], s26 offen offset:{256*i}")
    e("v_lshrrev_b32 v4, 3, v0"); e("v_and_b32 v5, 7, v0"); e("v_and_b32 v6, 16, v0"); e("v_lshrrev_b32 v6, 2, v6")
    e("v_xor_b32 v5, v5, v6"); e("v_lshlrev_b32 v4, 10, v4"); e("v_lshl_add_u32 v4, v5, 4, v4")
    e("s_lshl_b32 s48, s3, 15"); e("s_lshl_b32 s49, s25, 7"); e("s_add_u32 s48, s48, s49")
    e("s_lshl_b32 s49, s3, 12"); e("s_add_u32 s49, s49, 65536")
    for i in range(4):
        e("s_mov_b32 m0, s49"); e("s_add_u32 s49, s49, 1024")
        e("buffer_load_dwordx4 v4, s[32:35], s48 offen lds"); e("s_add_u32 s48, s48, 8192")
    e("v_lshlrev_b32 v7, 4, v0")
    e("s_cmp_ge_u32 s25, 4"); e("s_cbranch_scc1 k1_nokv")
    e("s_lshl_b32 s48, s3, 10"); e("s_add_u32 s49, s48, 131072"); e("s_mov_b32 m0, s49"); e("s_add_u32 s49, s49, 16384")
    e("buffer_load_dwordx4 v7, s[36:39], s48 offen lds"); e("s_mov_b32 m0, s49"); e("s_nop 0")
    e("buffer_load_dwordx4 v7, s[40:43], s48 offen lds")
    a.label("k1_nokv")
    e("s_mov_b32 s50, 0")
    e("s_cmp_lt_u32 s3, 8"); e("s_cbranch_scc1 k1_ln")
    e("s_sub_u32 s51, s3, 8"); e("s_lshl_b32 s51, s51, 8"); e("s_add_u32 s51, s51, s2")
    e("s_cmp_ge_u32 s51, 580"); e("s_cbranch_scc1 k1_ln")
    e("s_mov_b32 s50, 1")
    e("s_cmp_ge_u32 s51, 344"); e("s_cbranch_scc1 k1_w2")
    e("s_mov_b32 s52, 0"); srd(a,56,16,1409024)
    e("s_cmp_lt_u32 s51, 172"); e("s_cbranch_scc1 k1_gu")
    e("s_sub_u32 s51, s51, 172"); e("s_mov_b32 s52, 1024"); srd(a,56,18,1409024)
    a.label("k1_gu")
    e("s_lshl_b32 s51, s51, 6"); e("v_add_u32 v8, s51, v0")
    e("v_mul_u32_u24 v9, 24386, v8"); e("v_lshrrev_b32 v9, 22, v9")
    e("v_mul_u32_u24 v10, 172, v9"); e("v_sub_u32 v10, v8, v10")
    e("v_mul_u32_u24 v11, 22016, v9"); e("v_lshl_add_u32 v11, v10, 4, v11")
    e("v_lshrrev_b32 v12, 2, v10"); e("v_lshlrev_b32 v12, 16, v12")
    e("v_lshrrev_b32 v13, 1, v9"); e("v_lshl_add_u32 v12, v13, 11, v12")
    e("v_and_b32 v13, 1, v9"); e("v_lshl_add_u32 v12, v13, 9, v12")
    e("v_and_b32 v13, 3, v10"); e("v_lshl_add_u32 v12, v13, 7, v12")
    e(f"s_add_u32 s52, s52, {WGU}")
    for j in range(8): e(f"s_mov_b32 s{60+j}, {j*2752}")
    e("s_branch k1_rl")
    a.label("k1_w2")
    e("s_sub_u32 s51, s51, 344"); e("s_mov_b32 s53, 0"); srd(a,56,12,524288)
    e("s_cmp_lt_u32 s51, 64"); e("s_cbranch_scc1 k1_w2b")
    e("s_sub_u32 s51, s51, 64"); e("s_mov_b32 s53, 32"); srd(a,56,20,1409024)
    a.label("k1_w2b")
    e("s_lshr_b32 s54, s51, 1"); e("s_and_b32 s55, s51, 1")
    e("s_lshl_b32 s52, s54, 14"); e("s_lshl_b32 s51, s55, 12"); e("s_add_u32 s51, s51, s52")
    e("v_add_u32 v11, s51, v7")
    e("s_add_u32 s53, s53, s54"); e("s_lshl_b32 s53, s53, 10"); e("s_lshl_b32 s55, s55, 9"); e("s_add_u32 s52, s53, s55")
    e(f"s_add_u32 s52, s52, {W2}")
    e("v_lshrrev_b32 v12, 2, v0"); e(f"v_mul_u32_u24 v12, {118*1024}, v12")
    e("v_and_b32 v13, 3, v0"); e("v_lshl_add_u32 v12, v13, 7, v12")
    for j in range(8): e(f"s_mov_b32 s{60+j}, {(j&3)*1024+(j>>2)*8192}")
    a.label("k1_rl")
    for j in range(8): e(f"buffer_load_dwordx4 v[{64+4*j}:{67+4*j}], v11, s[56:59], s{60+j} offen")
    e("s_waitcnt vmcnt(12)"); e("s_branch k1_ln2")
    a.label("k1_ln")
    e("s_waitcnt vmcnt(4)")
    a.label("k1_ln2")
    for i in range(16):
        e(f"v_lshlrev_b32 v{32+2*i}, 16, v{16+i}"); e(f"v_and_b32 v{33+2*i}, 0xffff0000, v{16+i}")
    def tree(dst, regs, op):
        pass
    for i in range(4): e(f"v_add_f32 v{16+i}, v{32+i}, v{36+i}")
    for j in range(2,8):
        for i in range(4): e(f"v_add_f32 v{16+i}, v{16+i}, v{32+4*j+i}")
    e("v_add_f32 v16, v16, v17"); e("v_add_f32 v18, v18, v19"); e("v_add_f32 v16, v16, v18")
    allred(a,16,17,"v_add_f32",[4,8,16,32])
    e("v_mul_f32 v16, 0x3b000000, v16")
    for i in range(4): e(f"v_mov_b32 v{20+i}, 0")
    for j in range(32):
        e(f"v_sub_f32 v{24+j%4}, v{32+j}, v16"); e(f"v_fmac_f32 v{20+j%4}, v{24+j%4}, v{24+j%4}")
    e("v_add_f32 v20, v20, v21"); e("v_add_f32 v22, v22, v23"); e("v_add_f32 v20, v20, v22")
    allred(a,20,21,"v_add_f32",[4,8,16,32])
    e("v_mul_f32 v20, 0x3b000000, v20")
    def rb(r): e(f"v_cvt_pk_bf16_f32 v{r}, v{r}, v{r}"); e(f"v_and_b32 v{r}, 0xffff0000, v{r}")
    rb(16); rb(20); e("v_add_f32 v20, 0x3727c5ac, v20"); rb(20); e("v_sqrt_f32 v20, v20"); e("s_nop 0"); rb(20)
    e("v_rcp_f32 v20, v20"); e("s_nop 0"); e("v_mul_f32 v21, v16, v20"); e("v_sub_f32 v21, 0, v21")
    for j in range(32): e(f"v_fma_f32 v{32+j}, v{32+j}, v20, v21")
    for i in range(16): e(f"v_cvt_pk_bf16_f32 v{16+i}, v{32+2*i}, v{33+2*i}")
    e("s_lshr_b32 s48, s3, 3"); e("s_lshl_b32 s48, s48, 15"); e("s_and_b32 s49, s3, 7"); e("s_lshl_b32 s49, s49, 6"); e("s_add_u32 s48, s48, s49")
    e("v_lshrrev_b32 v4, 1, v2"); e("v_lshlrev_b32 v4, 10, v4"); e("v_and_b32 v5, 1, v2"); e("v_lshl_add_u32 v4, v5, 9, v4")
    e("v_lshl_add_u32 v4, v1, 4, v4"); e("v_add_u32 v4, s48, v4")
    for i in range(4): e(f"ds_write_b128 v4, v[{16+4*i}:{19+4*i}] offset:{8192*i}")
    e("s_waitcnt vmcnt(0) lgkmcnt(0)"); e("s_barrier")
    e("s_cmp_ge_u32 s3, 8"); e("s_cbranch_scc1 k1_rfin")
    e("s_cmp_ge_u32 s3, 4"); e("s_cbranch_scc1 k1_aux")
    def trlane():
        e("v_bfe_u32 v8, v0, 2, 2"); e("v_bfe_u32 v9, v0, 4, 1"); e("v_lshrrev_b32 v10, 5, v0"); e("v_lshl_add_u32 v10, v10, 3, v8")
    trlane()
    e("s_and_b32 s48, s3, 1"); e("s_lshr_b32 s49, s3, 1")
    e("s_lshl_b32 s51, s48, 6"); e("v_lshlrev_b32 v11, 3, v1"); e("v_lshl_add_u32 v11, v9, 5, v11"); e("v_add_u32 v11, s51, v11")
    e("v_and_b32 v12, 8, v0"); e("v_lshlrev_b32 v12, 3, v12"); e("v_xor_b32 v11, v11, v12")
    e("v_lshl_add_u32 v11, v10, 7, v11"); e("v_add_u32 v11, 0x10000, v11")
    e("s_lshl_b32 s51, s49, 15"); e("v_add_u32 v12, s51, v7")
    def chain(stepA, qoff, swap):
        for i in range(16): e(f"v_mov_b32 v{32+i}, 0")
        D=4
        def rd(s):
            b=64+8*(s%D)
            e(f"ds_read_b64_tr_b16 v[{b}:{b+1}], v11 offset:{s*stepA}"); e(f"ds_read_b64_tr_b16 v[{b+2}:{b+3}], v11 offset:{s*stepA+qoff}")
            e(f"ds_read_b128 v[{b+4}:{b+7}], v12 offset:{s*1024}")
        for s in range(D-1): rd(s)
        for s in range(32):
            if s+D-1<32: rd(s+D-1)
            e(f"s_waitcnt lgkmcnt({3*min(D-1,31-s)})")
            b=64+8*(s%D); A=f"v[{b}:{b+3}]"; B=f"v[{b+4}:{b+7}]"
            if swap: A,B=B,A
            e(f"v_mfma_f32_32x32x16_bf16 v[32:47], {A}, {B}, v[32:47]")
        e("s_nop 15")
    chain(2048,512,False)
    e(f"s_mov_b32 s51, {f2u(0.25*1.4426950408889634):#x}")
    for i in range(16): e(f"v_mul_f32 v{32+i}, s51, v{32+i}")
    for i in range(8): e(f"v_cvt_pk_bf16_f32 v{48+i}, v{32+2*i}, v{33+2*i}")
    e("s_lshl_b32 s51, s24, 1"); e("s_add_u32 s51, s51, s49"); e("s_lshl_b32 s51, s51, 5"); e("s_lshl_b32 s52, s25, 2"); e("s_add_u32 s51, s51, s52")
    e("s_lshl_b32 s52, s48, 1"); e("s_add_u32 s51, s51, s52"); e("s_lshl_b32 s51, s51, 10"); e(f"s_add_u32 s51, s51, {QF}")
    e("buffer_store_dwordx4 v[48:51], v7, s[44:47], s51 offen"); e("buffer_store_dwordx4 v[52:55], v7, s[44:47], s51 offen offset:1024")
    e("s_endpgm")
    a.label("k1_aux")
    e("s_cmp_ge_u32 s25, 4"); e("s_cbranch_scc1 k1_xn")
    e("s_cmp_lg_u32 s3, 4"); e("s_cbranch_scc1 k1_end")
    trlane()
    e("v_lshlrev_b32 v11, 3, v1"); e("v_lshl_add_u32 v11, v9, 14, v11"); e("v_lshl_add_u32 v11, v10, 5, v11"); e("v_add_u32 v11, 0x20000, v11")
    e("s_and_b32 s49, s25, 1"); e("s_lshl_b32 s51, s49, 15"); e("v_add_u32 v12, s51, v7")
    e("s_lshl_b32 s51, s24, 1"); e("s_add_u32 s49, s51, s49")
    e("s_lshl_b32 s51, s49, 11"); e(f"s_add_u32 s51, s51, {KV}")
    e("s_cmp_ge_u32 s25, 2"); e("s_cbranch_scc1 k1_v")
    chain(512,128,False)
    for i in range(4): e(f"v_cvt_pk_bf16_f32 v{48+i}, v{32+2*i}, v{33+2*i}")
    e("buffer_store_dwordx4 v[48:51], v7, s[44:47], s51 offen")
    sumsq(a,48,52,53)
    allred(a,52,53,"v_add_f32",[32]); allred(a,52,53,"v_max_f32",[1,2,4,8,16])
    e("s_lshl_b32 s49, s49, 2"); e(f"s_add_u32 s49, s49, {KMAX}"); e("v_mov_b32 v54, 0")
    e("s_mov_b64 exec, 1"); e("buffer_store_dword v52, v54, s[44:47], s49 offen")
    e("s_endpgm")
    a.label("k1_v")
    chain(512,128,True)
    for i in range(8): e(f"v_cvt_pk_bf16_f32 v{48+i}, v{32+2*i}, v{33+2*i}")
    e("v_and_b32 v8, 15, v0"); e("v_lshrrev_b32 v9, 5, v0"); e("v_lshl_add_u32 v8, v9, 4, v8"); e("v_lshlrev_b32 v8, 4, v8")
    e("s_mov_b32 exec_lo, 0xffff0000"); e("s_mov_b32 exec_hi, 0xffff0000")
    e("buffer_store_dwordx4 v[48:51], v8, s[44:47], s51 offen offset:1024"); e("buffer_store_dwordx4 v[52:55], v8, s[44:47], s51 offen offset:1536")
    e("s_endpgm")
    a.label("k1_xn")
    e("s_sub_u32 s48, s25, 4"); e("s_lshl_b32 s48, s48, 2"); e("s_add_u32 s48, s48, s3"); e("s_sub_u32 s48, s48, 4"); e("s_lshl_b32 s48, s48, 12")
    e("v_add_u32 v8, s48, v7")
    for i in range(4): e(f"ds_read_b128 v[{16+4*i}:{19+4*i}], v8 offset:{1024*i}")
    e("s_lshl_b32 s49, s24, 16"); e("s_add_u32 s48, s48, s49")
    for i in range(4):
        e(f"s_waitcnt lgkmcnt({3-i})"); e(f"buffer_store_dwordx4 v[{16+4*i}:{19+4*i}], v7, s[44:47], s48 offen offset:{1024*i}")
    e("s_endpgm")
    a.label("k1_rfin")
    e("s_cmp_eq_u32 s50, 0"); e("s_cbranch_scc1 k1_end")
    e("s_mov_b32 s48, 0x05040100"); e("s_mov_b32 s49, 0x07060302")
    for c in range(8):
        for p in range(4): e(f"v_perm_b32 v{16+4*c+p}, v{64+4*(2*p+1)+(c>>1)}, v{64+4*(2*p)+(c>>1)}, s{48+(c&1)}")
        e(f"buffer_store_dwordx4 v[{16+4*c}:{19+4*c}], v12, s[44:47], s52 offen offset:{16*c}")
    a.label("k1_end")
    e("s_endpgm")
    return a.text(), 96
```

```python
from common import *
THR=40.0
def k2():
    a=Asm('k2'); e=a.e
    e("s_cmp_ge_u32 s2, 256"); e("s_cbranch_scc1 k2_end")
    e("s_load_dwordx2 s[22:23], s[0:1], 88")
    e("v_lshrrev_b32 v1, 6, v0"); e("v_and_b32 v0, 63, v0"); e("s_nop 0")
    e("v_readfirstlane_b32 s3, v1")
    e("s_lshr_b32 s24, s2, 2"); e("s_and_b32 s25, s2, 3")
    e("v_lshlrev_b32 v7, 4, v0")
    e("s_waitcnt lgkmcnt(0)")
    srd(a,44,22,WS_SIZE)
    e("s_cmp_ge_u32 s3, 8"); e("s_cbranch_scc1 k2_ffn")
    Q=8; NC=16; S=[32,48]; O=64; P=80; KF=[88,92]; VF=[96,104]
    e("s_lshl_b32 s26, s25, 3"); e("s_add_u32 s26, s26, s3")
    e("s_lshl_b32 s27, s24, 5"); e("s_add_u32 s27, s27, s26"); e("s_lshl_b32 s27, s27, 10"); e(f"s_add_u32 s27, s27, {QF}")
    e(f"buffer_load_dwordx4 v[{Q}:{Q+3}], v7, s[44:47], s27 offen")
    e("v_lshlrev_b32 v2, 2, v0"); e(f"s_mov_b32 s27, {KMAX}")
    e("buffer_load_dword v3, v2, s[44:47], s27 offen")
    e("s_mul_i32 s28, s3, 3072"); e("s_mov_b32 m0, s28"); e(f"s_add_u32 s29, s28, {KV}")
    for i in range(3): e(f"buffer_load_dwordx4 v7, s[44:47], s29 offen offset:{1024*i} lds")
    e("s_lshl_b32 s28, s3, 10"); e("s_add_u32 s28, s28, 24576"); e(f"s_add_u32 s29, s28, {KV}")
    for j in range(13):
        e("s_mov_b32 m0, s28"); e("s_add_u32 s28, s28, 8192")
        e("buffer_load_dwordx4 v7, s[44:47], s29 offen lds"); e("s_add_u32 s29, s29, 8192")
    e("v_and_b32 v4, 27, v0"); e("v_cmp_eq_u32 vcc, 16, v4"); e("v_mov_b32 v5, 0x3f803f80"); e("v_mov_b32 v6, 0")
    e("v_cndmask_b32 v5, v6, v5, vcc")
    for i in range(16): e(f"v_mov_b32 v{VF[0]+i}, v5")
    for i in range(16): e(f"v_mov_b32 v{O+i}, 0")
    e("v_and_b32 v4, 15, v0"); e("v_lshrrev_b32 v5, 5, v0"); e("v_lshl_add_u32 v4, v5, 4, v4"); e("v_lshlrev_b32 v4, 4, v4"); e("v_add_u32 v4, 1024, v4")
    e("v_mov_b32 v5, v7")
    e("s_mov_b32 s30, 0x0000ffff"); e("s_mov_b32 s31, 0x0000ffff")
    e("s_waitcnt vmcnt(16)")
    sumsq(a,Q,12,13); allred(a,12,13,"v_add_f32",[32]); allred(a,3,13,"v_max_f32",[1,2,4,8,16,32])
    e("v_mul_f32 v12, v12, v3"); e("v_sqrt_f32 v12, v12"); e("s_nop 0"); e(f"v_mul_f32 v12, {f2u(1.002):#x}, v12")
    e(f"v_cmp_nge_f32 vcc, {f2u(THR):#x}, v12"); e("v_sub_f32 v12, 0, v12")
    for i in range(16): e(f"v_mov_b32 v{NC+i}, v12")
    e("s_waitcnt vmcnt(13)"); e("s_barrier")
    e("s_mov_b32 s32, 0")
    e("s_cbranch_vccz k2_go")
    e("s_waitcnt vmcnt(0)"); e("s_barrier"); e("s_mov_b32 s32, 1")
    e("v_mov_b32 v12, 0xff800000"); e("v_mov_b32 v13, v7"); e("s_mov_b32 s33, 64")
    a.label("k2_mx")
    e(f"ds_read_b128 v[{KF[0]}:{KF[0]+3}], v13"); e("v_add_u32 v13, 2048, v13"); e("s_waitcnt lgkmcnt(0)")
    e(f"v_mfma_f32_32x32x16_bf16 v[{S[0]}:{S[0]+15}], v[{KF[0]}:{KF[0]+3}], v[{Q}:{Q+3}], 0"); e("s_nop 15")
    for i in range(8): e(f"v_max3_f32 v12, v12, v{S[0]+2*i}, v{S[0]+2*i+1}")
    e("s_sub_u32 s33, s33, 1"); e("s_cmp_lg_u32 s33, 0"); e("s_cbranch_scc1 k2_mx")
    allred(a,12,13,"v_max_f32",[32]); e("v_sub_f32 v12, 0, v12")
    for i in range(16): e(f"v_mov_b32 v{NC+i}, v12")
    a.label("k2_go")
    def rdK(i): e(f"ds_read_b128 v[{KF[i&1]}:{KF[i&1]+3}], v5 offset:{2048*i}")
    def rdV(i,g): e(f"ds_read_b128 v[{VF[i&1]+4*g}:{VF[i&1]+4*g+3}], v4 offset:{2048*i+512*g}")
    def mS(i): e(f"v_mfma_f32_32x32x16_bf16 v[{S[i&1]}:{S[i&1]+15}], v[{KF[i&1]}:{KF[i&1]+3}], v[{Q}:{Q+3}], v[{NC}:{NC+15}]")
    def mO(i,g): e(f"v_mfma_f32_32x32x16_bf16 v[{O}:{O+15}], v[{VF[i&1]+4*g}:{VF[i&1]+4*g+3}], v[{P+4*g}:{P+4*g+3}], v[{O}:{O+15}]")
    rdK(0); rdK(1); e("s_mov_b64 exec, s[30:31]"); rdV(0,0); rdV(0,1); e("s_mov_b64 exec, -1")
    for i in range(4): e(f"v_mov_b32 v{P+4+i}, 0")
    e("s_waitcnt lgkmcnt(3)"); mS(0); e("s_mov_b32 s33, 8"); e("s_setprio 1"); e("s_nop 10")
    a.label("k2_loop")
    for i in range(8):
        s=S[i&1]
        ex=lambda j: e(f"v_exp_f32 v{s+j}, v{s+j}")
        cv=lambda j: e(f"v_cvt_pk_bf16_f32 v{P+j}, v{s+2*j}, v{s+2*j+1}")
        ex(0); ex(1)
        mO(i-1,1)
        ex(2); ex(3); cv(0)
        e("s_waitcnt lgkmcnt(0)")
        mS(i+1)
        rdK(i+2); e("s_mov_b64 exec, s[30:31]"); rdV(i+1,0); rdV(i+1,1); e("s_mov_b64 exec, -1")
        ex(4); ex(5); cv(1); ex(6); ex(7); cv(2); ex(8); ex(9); cv(3); ex(10); ex(11); cv(4)
        mO(i,0)
        ex(12); ex(13); cv(5); ex(14); ex(15); cv(6)
        if i==7:
            e("v_add_u32 v4, 16384, v4"); e("v_add_u32 v5, 16384, v5")
        else: e("s_nop 0")
        cv(7)
    e("s_cmp_lg_u32 s32, 0"); e("s_cbranch_scc1 k2_nb")
    e("s_waitcnt vmcnt(0)"); e("s_barrier"); e("s_mov_b32 s32, 1")
    a.label("k2_nb")
    e("s_sub_u32 s33, s33, 1"); e("s_cmp_lg_u32 s33, 0"); e("s_cbranch_scc1 k2_loop")
    mO(7,1); e("s_nop 15")
    e(f"v_rcp_f32 v12, v{O+8}"); e("s_mul_i32 s27, s24, 118"); e("s_add_u32 s27, s27, s26"); e("s_lshl_b32 s27, s27, 10"); e(f"s_add_u32 s27, s27, {OH}")
    for i in range(8): e(f"v_mul_f32 v{O+i}, v{O+i}, v12")
    for i in range(4): e(f"v_cvt_pk_bf16_f32 v{P+i}, v{O+2*i}, v{O+2*i+1}")
    e(f"buffer_store_dwordx4 v[{P}:{P+3}], v7, s[44:47], s27 offen")
    e("s_waitcnt lgkmcnt(0)")
    e("s_endpgm")
    a.label("k2_ffn")
    G=16; U=32; X=48; R=64; PD=8; XD=3
    e("s_sub_u32 s26, s3, 8")
    e("s_lshl_b32 s28, s26, 13"); e("s_lshl_b32 s29, s24, 15"); e("s_add_u32 s29, s29, s28"); e("s_add_u32 s28, s28, 131072")
    for j in range(2):
        e("s_mov_b32 m0, s28"); e("s_add_u32 s28, s28, 4096")
        for i in range(4): e(f"buffer_load_dwordx4 v7, s[44:47], s29 offen offset:{1024*i} lds")
        e("s_add_u32 s29, s29, 4096")
    e("s_mul_i32 s27, s25, 11"); e("s_add_u32 s27, s27, s26")
    e("s_lshl_b32 s34, s27, 16"); e(f"s_add_u32 s34, s34, {WGU}")
    def ld(s):
        b=R+8*(s%PD)
        e(f"buffer_load_dwordx4 v[{b}:{b+3}], v7, s[44:47], s34 offen offset:{2048*(s&1)}")
        e(f"buffer_load_dwordx4 v[{b+4}:{b+7}], v7, s[44:47], s34 offen offset:{2048*(s&1)+1024}")
        if s&1: e(f"s_add_u32 s34, s34, {4096 if s%32!=31 else 4096+3*65536}")
    for s in range(PD): ld(s)
    e("buffer_load_dword v2, v7, s[44:47], s34 offen"); e("buffer_load_dword v3, v7, s[44:47], s34 offen")
    e("v_add_u32 v5, 0x20000, v7")
    e(f"s_mov_b32 s36, {f2u(-2.302208198):#x}"); e(f"v_mov_b32 v6, {f2u(-2.302208198*0.044715):#x}")
    e("s_mov_b32 s32, 0")
    e(f"s_waitcnt vmcnt({2*PD+2})"); e("s_barrier")
    a.label("k2_item")
    def rx(s): e(f"ds_read_b128 v[{X+4*(s%4)}:{X+4*(s%4)+3}], v5 offset:{1024*s}")
    for s in range(XD): rx(s)
    for s in range(32):
        if s+XD<32: rx(s+XD)
        e(f"s_waitcnt vmcnt({2*PD-2+(2 if s<PD else 0)}) lgkmcnt({min(XD,31-s)})")
        b=R+8*(s%PD); x=X+4*(s%4)
        e(f"v_mfma_f32_32x32x16_bf16 v[{G}:{G+15}], v[{b}:{b+3}], v[{x}:{x+3}], "+("0" if s==0 else f"v[{G}:{G+15}]"))
        e(f"v_mfma_f32_32x32x16_bf16 v[{U}:{U+15}], v[{b+4}:{b+7}], v[{x}:{x+3}], "+("0" if s==0 else f"v[{U}:{U+15}]"))
        ld(s+PD)
    e("s_mul_i32 s35, s24, 118"); e("s_lshl_b32 s37, s27, 1"); e("s_add_u32 s35, s35, s37"); e("s_add_u32 s35, s35, 32"); e("s_lshl_b32 s35, s35, 10"); e(f"s_add_u32 s35, s35, {OH}")
    e("s_nop 8")
    T=128
    for j0 in range(0,16,4):
        js=range(j0,j0+4)
        for j in js: e(f"v_mul_f32 v{T+j%4}, v{G+j}, v{G+j}")
        for j in js: e(f"v_fma_f32 v{T+j%4}, v{T+j%4}, v6, s36")
        for j in js: e(f"v_mul_f32 v{T+j%4}, v{T+j%4}, v{G+j}")
        for j in js: e(f"v_exp_f32 v{T+j%4}, v{T+j%4}"); e(f"v_mul_f32 v{G+j}, v{G+j}, v{U+j}")
        for j in js: e(f"v_add_f32 v{T+j%4}, 1.0, v{T+j%4}")
        for j in js: e(f"v_rcp_f32 v{T+j%4}, v{T+j%4}")
        e("s_nop 0")
        for j in js: e(f"v_mul_f32 v{G+j}, v{G+j}, v{T+j%4}")
        for j in (j0,j0+2): e(f"v_cvt_pk_bf16_f32 v{8+j//2}, v{G+j}, v{G+j+1}")
    e("buffer_store_dwordx4 v[8:11], v7, s[44:47], s35 offen"); e("buffer_store_dwordx4 v[12:15], v7, s[44:47], s35 offen offset:1024")
    e("s_cmp_lg_u32 s32, 0"); e("s_cbranch_scc1 k2_fnb")
    e("s_barrier"); e("s_mov_b32 s32, 1")
    a.label("k2_fnb")
    e("s_add_u32 s26, s26, 4"); e("s_add_u32 s27, s27, 4")
    e("s_cmp_ge_u32 s26, 11"); e("s_cbranch_scc1 k2_fend")
    e("s_cmp_lt_u32 s27, 43"); e("s_cbranch_scc1 k2_item")
    a.label("k2_fend")
    e("s_waitcnt vmcnt(0)")
    a.label("k2_end")
    e("s_endpgm")
    return a.text(), 136
```

```python
from common import *
def k3():
    a=Asm('k3'); e=a.e
    e("s_cmp_ge_u32 s2, 256"); e("s_cbranch_scc1 k3_end")
    e("s_load_dwordx2 s[4:5], s[0:1], 0"); e("s_load_dwordx2 s[6:7], s[0:1], 72"); e("s_load_dwordx2 s[22:23], s[0:1], 88")
    e("v_lshrrev_b32 v1, 6, v0"); e("v_and_b32 v0, 63, v0"); e("s_nop 0")
    e("v_readfirstlane_b32 s3, v1")
    e("s_and_b32 s24, s2, 7"); e("s_lshl_b32 s24, s24, 2"); e("s_bfe_u32 s25, s2, 0x20003"); e("s_add_u32 s24, s24, s25")
    e("s_lshr_b32 s25, s2, 5")
    e("v_lshlrev_b32 v7, 4, v0"); e(f"v_add_u32 v6, {118*1024}, v7")
    e(f"s_mul_i32 s26, s25, {236*1024}"); e("s_lshl_b32 s28, s3, 10"); e("s_add_u32 s26, s26, s28"); e(f"s_add_u32 s26, s26, {W2}")
    e(f"s_mul_i32 s27, s24, {236*1024}"); e("s_add_u32 s27, s27, s28"); e(f"s_add_u32 s27, s27, {OH}")
    e("s_waitcnt lgkmcnt(0)")
    srd(a,44,22,WS_SIZE); srd(a,28,4,2097152); srd(a,32,6,2097152)
    ACC=16; R=80; PD=7; XR=8
    def ld(i):
        b=R+16*(i%PD)
        e(f"buffer_load_dwordx4 v[{b}:{b+3}], v7, s[44:47], s26 offen"); e(f"buffer_load_dwordx4 v[{b+8}:{b+11}], v7, s[44:47], s27 offen")
        e(f"buffer_load_dwordx4 v[{b+4}:{b+7}], v6, s[44:47], s26 offen"); e(f"buffer_load_dwordx4 v[{b+12}:{b+15}], v6, s[44:47], s27 offen")
        e("s_add_u32 s26, s26, 4096"); e("s_add_u32 s27, s27, 4096")
    e("s_lshl_b32 s36, s24, 1"); e("s_lshr_b32 s37, s3, 1"); e("s_add_u32 s36, s36, s37"); e("s_lshl_b32 s36, s36, 15")
    e("s_lshl_b32 s37, s25, 1"); e("s_and_b32 s38, s3, 1"); e("s_add_u32 s37, s37, s38"); e("s_lshl_b32 s37, s37, 6"); e("s_add_u32 s36, s36, s37")
    e("v_and_b32 v2, 31, v0"); e("v_lshrrev_b32 v3, 5, v0"); e("v_lshlrev_b32 v2, 10, v2"); e("v_lshl_add_u32 v2, v3, 3, v2")
    for i in range(PD): ld(i)
    def mm(i):
        b=R+16*(i%PD)
        for t in range(4):
            A=b+4*(t&1); B=b+8+4*(t>>1); c=ACC+16*t
            e(f"v_mfma_f32_32x32x16_bf16 v[{c}:{c+15}], v[{A}:{A+3}], v[{B}:{B+3}], "+("0" if i==0 else f"v[{c}:{c+15}]"))
    for i in range(29):
        rem=min(PD-1,29-i)
        e(f"s_waitcnt vmcnt({4*rem+(4 if i+PD>30 else 0)})")
        mm(i)
        if i+PD<30: ld(i+PD)
        if i+PD==30:
            for q in range(4): e(f"buffer_load_dwordx2 v[{XR+2*q}:{XR+2*q+1}], v2, s[28:31], s36 offen offset:{16*q}")
    e("s_waitcnt vmcnt(4)"); e("s_cmp_ge_u32 s3, 2"); e("s_cbranch_scc1 k3_red")
    mm(29)
    a.label("k3_red")
    e("s_lshl_b32 s39, s3, 12"); e("v_add_u32 v4, s39, v7"); e("s_nop 15")
    for t in range(4):
        e(f"s_cmp_eq_u32 s3, {t}"); e(f"s_cbranch_scc1 k3_sk{t}")
        for q in range(4): e(f"ds_write_b128 v4, v[{ACC+16*t+4*q}:{ACC+16*t+4*q+3}] offset:{16384*t+1024*q}")
        e(f"s_branch k3_n{t}")
        a.label(f"k3_sk{t}")
        for q in range(16): e(f"v_mov_b32 v{R+64+q}, v{ACC+16*t+q}")
        a.label(f"k3_n{t}")
    e("s_waitcnt lgkmcnt(0)"); e("s_barrier")
    e("s_lshl_b32 s39, s3, 14")
    for k in range(1,4):
        e(f"s_add_u32 s40, s3, {k}"); e("s_and_b32 s40, s40, 3"); e("s_lshl_b32 s40, s40, 12"); e("s_add_u32 s40, s40, s39"); e("v_add_u32 v5, s40, v7")
        for q in range(4): e(f"ds_read_b128 v[{R+16*(k-1)+4*q}:{R+16*(k-1)+4*q+3}], v5 offset:{1024*q}")
    F=R+64
    e("s_waitcnt vmcnt(0)")
    for q in range(8):
        e(f"v_lshlrev_b32 v1, 16, v{XR+q}"); e(f"v_add_f32 v{F+2*q}, v{F+2*q}, v1"); e(f"v_and_b32 v1, 0xffff0000, v{XR+q}"); e(f"v_add_f32 v{F+2*q+1}, v{F+2*q+1}, v1")
    for k in range(3):
        e(f"s_waitcnt lgkmcnt({8-4*k})")
        for q in range(16): e(f"v_add_f32 v{F+q}, v{F+q}, v{R+16*k+q}")
    for q in range(8): e(f"v_cvt_pk_bf16_f32 v{XR+q}, v{F+2*q}, v{F+2*q+1}")
    for q in range(4): e(f"buffer_store_dwordx2 v[{XR+2*q}:{XR+2*q+1}], v2, s[32:35], s36 offen offset:{16*q}")
    a.label("k3_end")
    e("s_endpgm")
    return a.text(), 192
```

```python
import sys,importlib
sys.path.insert(0,'gen')
from k1 import k1
from k2 import k2
from k3 import k3
N='parallel_sum__grouped_kv_mqa__glu_gated_geglu__prompt'
ref=open(f'cdna_kernels/{N}.s.ref').read()
hdr=ref[:ref.index('; Override launch')]
ks=[('prep_kernel',k1,1024,163840),('attn_kernel',k2,768,163840),('outp_kernel',k3,256,65536)]
s=hdr
for n,f,b,l in ks: s+=f"; @launch kernel={n} grid=(256,1,1) block=({b},1,1) lds={l}\n"
s+='.amdgcn_target "amdgcn-amd-amdhsa--gfx950"\n.text\n'
d='.section .rodata,"a"\n'
for n,f,b,l in ks:
    t,v=f()
    s+=f".globl {n}\n.p2align 8\n.type {n},@function\n{n}:\n"+t
    d+=f""".p2align 6
.amdhsa_kernel {n}
  .amdhsa_next_free_vgpr {v}
  .amdhsa_next_free_sgpr 102
  .amdhsa_accum_offset {v}
  .amdhsa_group_segment_fixed_size 0
  .amdhsa_kernarg_size 96
  .amdhsa_user_sgpr_count 2
  .amdhsa_user_sgpr_kernarg_segment_ptr 1
  .amdhsa_system_sgpr_workgroup_id_x 1
.end_amdhsa_kernel
"""
out=sys.argv[1] if len(sys.argv)>1 else f'cdna_kernels/{N}.s'
open(out,'w').write(s+d)
```

```python
import struct
XN=0; QF=0x200000; KV=0x400000; KMAX=0x420000; WGU=0x500000; W2=0x800000; OH=0xA00000; YP=0xC00000; WS_SIZE=0x1400000
def f2u(f): return struct.unpack('<I',struct.pack('<f',f))[0]
class Asm:
    def __init__(s,n): s.l=[]; s.n=n
    def e(s,t): s.l.append("    "+t)
    def label(s,t): s.l.append(t+":")
    def text(s): return "\n".join(s.l)+"\n"
def srd(a,d,b,n):
    a.e(f"s_mov_b32 s{d}, s{b}"); a.e(f"s_mov_b32 s{d+1}, s{b+1}"); a.e(f"s_mov_b32 s{d+2}, {n}"); a.e(f"s_mov_b32 s{d+3}, 0x00020000")
def allred(a,r,t,op,steps):
    for s in steps:
        a.e("s_nop 1")
        if s==1: a.e(f"{op}_dpp v{r}, v{r}, v{r} quad_perm:[1,0,3,2] row_mask:0xf bank_mask:0xf")
        elif s==2: a.e(f"{op}_dpp v{r}, v{r}, v{r} quad_perm:[2,3,0,1] row_mask:0xf bank_mask:0xf")
        elif s==4:
            a.e(f"v_mov_b32_dpp v{t}, v{r} row_ror:4 row_mask:0xf bank_mask:0xf"); a.e(f"{op} v{r}, v{r}, v{t}")
        elif s==8:
            a.e(f"v_mov_b32_dpp v{t}, v{r} row_ror:8 row_mask:0xf bank_mask:0xf"); a.e(f"{op} v{r}, v{r}, v{t}")
        else:
            a.e(f"v_mov_b32 v{t}, v{r}"); a.e("s_nop 1"); a.e(f"v_permlane{s}_swap_b32 v{r}, v{t}"); a.e("s_nop 1"); a.e(f"{op} v{r}, v{r}, v{t}")
def sumsq(a,src,d,t):
    for i in range(4):
        a.e(f"v_lshlrev_b32 v{t}, 16, v{src+i}")
        a.e(f"v_mul_f32 v{d}, v{t}, v{t}" if i==0 else f"v_fmac_f32 v{d}, v{t}, v{t}")
        a.e(f"v_and_b32 v{t}, 0xffff0000, v{src+i}"); a.e(f"v_fmac_f32 v{d}, v{t}, v{t}")
import os
STAMP=int(os.environ.get('STAMP','0'))
def stamp(a,i,real=False):
    if not STAMP: return
    a.e(("s_memrealtime" if real else "s_memtime")+" s[90:91]"); a.e("s_waitcnt lgkmcnt(0)"); a.e(f"s_mov_b32 s{70+i}, s90")
def stamp_out(a,n,wave,slot,wg=None):
    if not STAMP: return
    wg=STAMP-1
    L=f"st_{a.n}_{wave}_{slot}"
    a.e(f"s_cmp_lg_u32 s2, {wg}"); a.e(f"s_cbranch_scc1 {L}"); a.e(f"s_cmp_lg_u32 s3, {wave}"); a.e(f"s_cbranch_scc1 {L}")
    a.e("s_load_dwordx2 s[92:93], s[0:1], 80"); a.e("s_waitcnt lgkmcnt(0)"); a.e("s_mov_b32 s94, 256"); a.e("s_mov_b32 s95, 0x20000"); a.e("s_mov_b64 exec, 1")
    a.e("v_mov_b32 v0, 0")
    for i in range(n):
        a.e(f"v_mov_b32 v1, s{70+i}"); a.e(f"buffer_store_dword v1, v0, s[92:95], 0 offen offset:{4*(slot+i)}")
    a.e("s_waitcnt vmcnt(0)")
    a.label(L)
```

```python
from common import *
def k1():
    a=Asm('k1')
    e=a.e
    e("s_cmp_ge_u32 s2, 256"); e("s_cbranch_scc1 k1_end")
    e("s_load_dwordx8 s[4:11], s[0:1], 0")
    e("s_load_dwordx2 s[12:13], s[0:1], 32")
    e("s_load_dwordx4 s[16:19], s[0:1], 48")
    e("s_load_dwordx2 s[20:21], s[0:1], 64")
    e("s_load_dwordx2 s[22:23], s[0:1], 88")
    e("v_lshrrev_b32 v1, 6, v0"); e("v_and_b32 v0, 63, v0"); e("s_nop 0")
    e("v_readfirstlane_b32 s3, v1")
    e("s_and_b32 s24, s2, 7"); e("s_lshl_b32 s24, s24, 2"); e("s_bfe_u32 s25, s2, 0x20003"); e("s_add_u32 s24, s24, s25"); e("s_lshr_b32 s25, s2, 5")
    e("v_and_b32 v1, 3, v0"); e("v_lshrrev_b32 v2, 2, v0")
    e("s_lshl_b32 s26, s24, 6"); e("s_lshl_b32 s27, s3, 2"); e("s_add_u32 s26, s26, s27"); e("s_lshl_b32 s26, s26, 10")
    e("v_lshlrev_b32 v3, 10, v1"); e("v_lshl_add_u32 v3, v2, 4, v3")
    e("s_waitcnt lgkmcnt(0)")
    srd(a,28,4,2097152); srd(a,32,6,524288); srd(a,36,8,16384); srd(a,40,10,16384); srd(a,44,22,WS_SIZE)
    stamp(a,0); stamp(a,6,True)
    for i in range(4): e(f"buffer_load_dwordx4 v[{16+4*i}:{19+4*i}], v3, s[28:31], s26 offen offset:{256*i}")
    e("v_lshrrev_b32 v4, 3, v0"); e("v_and_b32 v5, 7, v0"); e("v_and_b32 v6, 16, v0"); e("v_lshrrev_b32 v6, 2, v6")
    e("v_xor_b32 v5, v5, v6"); e("v_lshlrev_b32 v4, 10, v4"); e("v_lshl_add_u32 v4, v5, 4, v4")
    e("s_lshl_b32 s48, s3, 15"); e("s_lshl_b32 s49, s25, 7"); e("s_add_u32 s48, s48, s49")
    e("s_lshl_b32 s49, s3, 12"); e("s_add_u32 s49, s49, 65536")
    for i in range(4):
        e("s_mov_b32 m0, s49"); e("s_add_u32 s49, s49, 1024")
        e("buffer_load_dwordx4 v4, s[32:35], s48 offen lds"); e("s_add_u32 s48, s48, 8192")
    e("v_lshlrev_b32 v7, 4, v0")
    e("s_cmp_ge_u32 s25, 4"); e("s_cbranch_scc1 k1_nokv")
    e("s_lshl_b32 s48, s3, 10"); e("s_add_u32 s49, s48, 131072"); e("s_mov_b32 m0, s49"); e("s_add_u32 s49, s49, 16384")
    e("buffer_load_dwordx4 v7, s[36:39], s48 offen lds"); e("s_mov_b32 m0, s49"); e("s_nop 0")
    e("buffer_load_dwordx4 v7, s[40:43], s48 offen lds")
    a.label("k1_nokv")
    e("s_mov_b32 s50, 0")
    e("s_cmp_lt_u32 s3, 8"); e("s_cbranch_scc1 k1_ln")
    e("s_sub_u32 s51, s3, 8"); e("s_lshl_b32 s51, s51, 8"); e("s_add_u32 s51, s51, s2")
    e("s_cmp_ge_u32 s51, 580"); e("s_cbranch_scc1 k1_ln")
    e("s_mov_b32 s50, 1")
    e("s_cmp_ge_u32 s51, 344"); e("s_cbranch_scc1 k1_w2")
    e("s_mov_b32 s52, 0"); srd(a,56,16,1409024)
    e("s_cmp_lt_u32 s51, 172"); e("s_cbranch_scc1 k1_gu")
    e("s_sub_u32 s51, s51, 172"); e("s_mov_b32 s52, 1024"); srd(a,56,18,1409024)
    a.label("k1_gu")
    e("s_lshl_b32 s51, s51, 6"); e("v_add_u32 v8, s51, v0")
    e("v_mul_u32_u24 v9, 24386, v8"); e("v_lshrrev_b32 v9, 22, v9")
    e("v_mul_u32_u24 v10, 172, v9"); e("v_sub_u32 v10, v8, v10")
    e("v_mul_u32_u24 v11, 22016, v9"); e("v_lshl_add_u32 v11, v10, 4, v11")
    e("v_lshrrev_b32 v12, 2, v10"); e("v_lshlrev_b32 v12, 16, v12")
    e("v_lshrrev_b32 v13, 1, v9"); e("v_lshl_add_u32 v12, v13, 11, v12")
    e("v_and_b32 v13, 1, v9"); e("v_lshl_add_u32 v12, v13, 9, v12")
    e("v_and_b32 v13, 3, v10"); e("v_lshl_add_u32 v12, v13, 7, v12")
    e(f"s_add_u32 s52, s52, {WGU}")
    for j in range(8): e(f"s_mov_b32 s{60+j}, {j*2752}")
    e("s_branch k1_rl")
    a.label("k1_w2")
    e("s_sub_u32 s51, s51, 344"); e("s_mov_b32 s53, 0"); srd(a,56,12,524288)
    e("s_cmp_lt_u32 s51, 64"); e("s_cbranch_scc1 k1_w2b")
    e("s_sub_u32 s51, s51, 64"); e("s_mov_b32 s53, 32"); srd(a,56,20,1409024)
    a.label("k1_w2b")
    e("s_lshr_b32 s54, s51, 1"); e("s_and_b32 s55, s51, 1")
    e("s_lshl_b32 s52, s54, 14"); e("s_lshl_b32 s51, s55, 12"); e("s_add_u32 s51, s51, s52")
    e("v_add_u32 v11, s51, v7")
    e("s_add_u32 s53, s53, s54"); e("s_lshl_b32 s53, s53, 10"); e("s_lshl_b32 s55, s55, 9"); e("s_add_u32 s52, s53, s55")
    e(f"s_add_u32 s52, s52, {W2}")
    e("v_lshrrev_b32 v12, 2, v0"); e(f"v_mul_u32_u24 v12, {118*1024}, v12")
    e("v_and_b32 v13, 3, v0"); e("v_lshl_add_u32 v12, v13, 7, v12")
    for j in range(8): e(f"s_mov_b32 s{60+j}, {(j&3)*1024+(j>>2)*8192}")
    a.label("k1_rl")
    for j in range(8): e(f"buffer_load_dwordx4 v[{64+4*j}:{67+4*j}], v11, s[56:59], s{60+j} offen")
    e("s_waitcnt vmcnt(12)"); e("s_branch k1_ln2")
    a.label("k1_ln")
    e("s_waitcnt vmcnt(4)")
    a.label("k1_ln2")
    stamp(a,1)
    for i in range(16):
        e(f"v_lshlrev_b32 v{32+2*i}, 16, v{16+i}"); e(f"v_and_b32 v{33+2*i}, 0xffff0000, v{16+i}")
    def tree(dst, regs, op):
        pass
    for i in range(4): e(f"v_add_f32 v{16+i}, v{32+i}, v{36+i}")
    for j in range(2,8):
        for i in range(4): e(f"v_add_f32 v{16+i}, v{16+i}, v{32+4*j+i}")
    e("v_add_f32 v16, v16, v17"); e("v_add_f32 v18, v18, v19"); e("v_add_f32 v16, v16, v18")
    allred(a,16,17,"v_add_f32",[4,8,16,32])
    e("v_mul_f32 v16, 0x3b000000, v16")
    for i in range(4): e(f"v_mov_b32 v{20+i}, 0")
    for j in range(32):
        e(f"v_sub_f32 v{24+j%4}, v{32+j}, v16"); e(f"v_fmac_f32 v{20+j%4}, v{24+j%4}, v{24+j%4}")
    e("v_add_f32 v20, v20, v21"); e("v_add_f32 v22, v22, v23"); e("v_add_f32 v20, v20, v22")
    allred(a,20,21,"v_add_f32",[4,8,16,32])
    e("v_mul_f32 v20, 0x3b000000, v20")
    def rb(r): e(f"v_cvt_pk_bf16_f32 v{r}, v{r}, v{r}"); e(f"v_and_b32 v{r}, 0xffff0000, v{r}")
    rb(16); rb(20); e("v_add_f32 v20, 0x3727c5ac, v20"); rb(20); e("v_sqrt_f32 v20, v20"); e("s_nop 0"); rb(20)
    e("v_rcp_f32 v20, v20"); e("s_nop 0"); e("v_mul_f32 v21, v16, v20"); e("v_sub_f32 v21, 0, v21")
    for j in range(32): e(f"v_fma_f32 v{32+j}, v{32+j}, v20, v21")
    for i in range(16): e(f"v_cvt_pk_bf16_f32 v{16+i}, v{32+2*i}, v{33+2*i}")
    e("s_lshr_b32 s48, s3, 3"); e("s_lshl_b32 s48, s48, 15"); e("s_and_b32 s49, s3, 7"); e("s_lshl_b32 s49, s49, 6"); e("s_add_u32 s48, s48, s49")
    e("v_lshrrev_b32 v4, 1, v2"); e("v_lshlrev_b32 v4, 10, v4"); e("v_and_b32 v5, 1, v2"); e("v_lshl_add_u32 v4, v5, 9, v4")
    e("v_lshl_add_u32 v4, v1, 4, v4"); e("v_add_u32 v4, s48, v4")
    for i in range(4): e(f"ds_write_b128 v4, v[{16+4*i}:{19+4*i}] offset:{8192*i}")
    stamp(a,2); e("s_cmp_lg_u32 s50, 0"); e("s_cbranch_scc1 k1_bw"); e("s_waitcnt vmcnt(0)"); a.label("k1_bw"); e("s_waitcnt vmcnt(8) lgkmcnt(0)"); stamp(a,3); e("s_barrier"); stamp(a,4)
    e("s_cmp_ge_u32 s3, 8"); e("s_cbranch_scc1 k1_rfin")
    e("s_cmp_ge_u32 s3, 4"); e("s_cbranch_scc1 k1_aux")
    def trlane():
        e("v_bfe_u32 v8, v0, 2, 2"); e("v_bfe_u32 v9, v0, 4, 1"); e("v_lshrrev_b32 v10, 5, v0"); e("v_lshl_add_u32 v10, v10, 3, v8")
    trlane()
    e("s_and_b32 s48, s3, 1"); e("s_lshr_b32 s49, s3, 1")
    e("s_lshl_b32 s51, s48, 6"); e("v_lshlrev_b32 v11, 3, v1"); e("v_lshl_add_u32 v11, v9, 5, v11"); e("v_add_u32 v11, s51, v11")
    e("v_and_b32 v12, 8, v0"); e("v_lshlrev_b32 v12, 3, v12"); e("v_xor_b32 v11, v11, v12")
    e("v_lshl_add_u32 v11, v10, 7, v11"); e("v_add_u32 v11, 0x10000, v11")
    e("s_lshl_b32 s51, s49, 15"); e("v_add_u32 v12, s51, v7")
    def chain(stepA, qoff, swap):
        for i in range(16): e(f"v_mov_b32 v{32+i}, 0")
        D=4
        def rd(s):
            b=64+8*(s%D)
            e(f"ds_read_b64_tr_b16 v[{b}:{b+1}], v11 offset:{s*stepA}"); e(f"ds_read_b64_tr_b16 v[{b+2}:{b+3}], v11 offset:{s*stepA+qoff}")
            e(f"ds_read_b128 v[{b+4}:{b+7}], v12 offset:{s*1024}")
        for s in range(D-1): rd(s)
        for s in range(32):
            if s+D-1<32: rd(s+D-1)
            e(f"s_waitcnt lgkmcnt({3*min(D-1,31-s)})")
            b=64+8*(s%D); A=f"v[{b}:{b+3}]"; B=f"v[{b+4}:{b+7}]"
            if swap: A,B=B,A
            e(f"v_mfma_f32_32x32x16_bf16 v[32:47], {A}, {B}, v[32:47]")
        e("s_nop 15")
    chain(2048,512,False)
    e(f"s_mov_b32 s51, {f2u(0.25*1.4426950408889634):#x}")
    for i in range(16): e(f"v_mul_f32 v{32+i}, s51, v{32+i}")
    for i in range(8): e(f"v_cvt_pk_bf16_f32 v{48+i}, v{32+2*i}, v{33+2*i}")
    e("s_lshl_b32 s51, s24, 1"); e("s_add_u32 s51, s51, s49"); e("s_lshl_b32 s51, s51, 5"); e("s_lshl_b32 s52, s25, 2"); e("s_add_u32 s51, s51, s52")
    e("s_lshl_b32 s52, s48, 1"); e("s_add_u32 s51, s51, s52"); e("s_lshl_b32 s51, s51, 10"); e(f"s_add_u32 s51, s51, {QF}")
    e("buffer_store_dwordx4 v[48:51], v7, s[44:47], s51 offen"); e("buffer_store_dwordx4 v[52:55], v7, s[44:47], s51 offen offset:1024")
    stamp(a,5); e("s_waitcnt vmcnt(0)"); stamp(a,7,True); stamp_out(a,8,0,0)
    e("s_endpgm")
    a.label("k1_aux")
    e("s_cmp_ge_u32 s25, 4"); e("s_cbranch_scc1 k1_xn")
    e("s_cmp_lg_u32 s3, 4"); e("s_cbranch_scc1 k1_end")
    trlane()
    e("v_lshlrev_b32 v11, 3, v1"); e("v_lshl_add_u32 v11, v9, 14, v11"); e("v_lshl_add_u32 v11, v10, 5, v11"); e("v_add_u32 v11, 0x20000, v11")
    e("s_and_b32 s49, s25, 1"); e("s_lshl_b32 s51, s49, 15"); e("v_add_u32 v12, s51, v7")
    e("s_lshl_b32 s51, s24, 1"); e("s_add_u32 s49, s51, s49")
    e("s_lshl_b32 s51, s49, 11"); e(f"s_add_u32 s51, s51, {KV}")
    e("s_cmp_ge_u32 s25, 2"); e("s_cbranch_scc1 k1_v")
    chain(512,128,False)
    for i in range(4): e(f"v_cvt_pk_bf16_f32 v{48+i}, v{32+2*i}, v{33+2*i}")
    e("buffer_store_dwordx4 v[48:51], v7, s[44:47], s51 offen")
    sumsq(a,48,52,53)
    allred(a,52,53,"v_add_f32",[32]); allred(a,52,53,"v_max_f32",[1,2,4,8,16])
    e("s_lshl_b32 s49, s49, 2"); e(f"s_add_u32 s49, s49, {KMAX}"); e("v_mov_b32 v54, 0")
    e("s_mov_b64 exec, 1"); e("buffer_store_dword v52, v54, s[44:47], s49 offen")
    e("s_endpgm")
    a.label("k1_v")
    chain(512,128,True)
    for i in range(8): e(f"v_cvt_pk_bf16_f32 v{48+i}, v{32+2*i}, v{33+2*i}")
    e("v_and_b32 v8, 15, v0"); e("v_lshrrev_b32 v9, 5, v0"); e("v_lshl_add_u32 v8, v9, 4, v8"); e("v_lshlrev_b32 v8, 4, v8")
    e("s_mov_b32 exec_lo, 0xffff0000"); e("s_mov_b32 exec_hi, 0xffff0000")
    e("buffer_store_dwordx4 v[48:51], v8, s[44:47], s51 offen offset:1024"); e("buffer_store_dwordx4 v[52:55], v8, s[44:47], s51 offen offset:1536")
    e("s_endpgm")
    a.label("k1_xn")
    e("s_sub_u32 s48, s25, 4"); e("s_lshl_b32 s48, s48, 2"); e("s_add_u32 s48, s48, s3"); e("s_sub_u32 s48, s48, 4"); e("s_lshl_b32 s48, s48, 12")
    e("v_add_u32 v8, s48, v7")
    for i in range(4): e(f"ds_read_b128 v[{16+4*i}:{19+4*i}], v8 offset:{1024*i}")
    e("s_lshl_b32 s49, s24, 16"); e("s_add_u32 s48, s48, s49")
    for i in range(4):
        e(f"s_waitcnt lgkmcnt({3-i})"); e(f"buffer_store_dwordx4 v[{16+4*i}:{19+4*i}], v7, s[44:47], s48 offen offset:{1024*i}")
    e("s_endpgm")
    a.label("k1_rfin")
    e("s_cmp_eq_u32 s50, 0"); e("s_cbranch_scc1 k1_end")
    e("s_mov_b32 s48, 0x05040100"); e("s_mov_b32 s49, 0x07060302"); e("s_waitcnt vmcnt(0)")
    for c in range(8):
        for p in range(4): e(f"v_perm_b32 v{16+4*c+p}, v{64+4*(2*p+1)+(c>>1)}, v{64+4*(2*p)+(c>>1)}, s{48+(c&1)}")
        e(f"buffer_store_dwordx4 v[{16+4*c}:{19+4*c}], v12, s[44:47], s52 offen offset:{16*c}")
    stamp(a,5); e("s_waitcnt vmcnt(0)"); stamp(a,7,True); stamp_out(a,8,8,8)
    a.label("k1_end")
    e("s_endpgm")
    return a.text(), 96
```

```python
from common import *
import os
THR=40.0
FPRIO=int(os.environ.get('FPRIO','0'))
def k2():
    a=Asm('k2'); e=a.e
    e("s_cmp_ge_u32 s2, 256"); e("s_cbranch_scc1 k2_end")
    e("s_load_dwordx2 s[22:23], s[0:1], 88")
    e("v_lshrrev_b32 v1, 6, v0"); e("v_and_b32 v0, 63, v0"); e("s_nop 0")
    e("v_readfirstlane_b32 s3, v1")
    e("s_lshr_b32 s24, s2, 2"); e("s_and_b32 s25, s2, 3")
    e("v_lshlrev_b32 v7, 4, v0")
    e("s_waitcnt lgkmcnt(0)")
    srd(a,44,22,WS_SIZE)
    stamp(a,0); stamp(a,6,True)
    e("s_cmp_ge_u32 s3, 8"); e("s_cbranch_scc1 k2_ffn")
    Q=8; NC=16; S=[32,48]; O=64; P=80; KF=[88,92]; VF=[96,104]
    e("s_lshl_b32 s26, s25, 3"); e("s_add_u32 s26, s26, s3")
    e("s_lshl_b32 s27, s24, 5"); e("s_add_u32 s27, s27, s26"); e("s_lshl_b32 s27, s27, 10"); e(f"s_add_u32 s27, s27, {QF}")
    e(f"buffer_load_dwordx4 v[{Q}:{Q+3}], v7, s[44:47], s27 offen")
    e("v_lshlrev_b32 v2, 2, v0"); e(f"s_mov_b32 s27, {KMAX}")
    e("buffer_load_dword v3, v2, s[44:47], s27 offen")
    e("s_mul_i32 s28, s3, 3072"); e("s_mov_b32 m0, s28"); e(f"s_add_u32 s29, s28, {KV}")
    for i in range(3): e(f"buffer_load_dwordx4 v7, s[44:47], s29 offen offset:{1024*i} lds")
    e("v_and_b32 v4, 27, v0"); e("v_cmp_eq_u32 vcc, 16, v4"); e("v_mov_b32 v5, 0x3f803f80"); e("v_mov_b32 v6, 0")
    e("v_cndmask_b32 v5, v6, v5, vcc")
    for i in range(16): e(f"v_mov_b32 v{VF[0]+i}, v5")
    for i in range(16): e(f"v_mov_b32 v{O+i}, 0")
    e("v_and_b32 v4, 15, v0"); e("v_lshrrev_b32 v5, 5, v0"); e("v_lshl_add_u32 v4, v5, 4, v4"); e("v_lshlrev_b32 v4, 4, v4"); e("v_add_u32 v4, 1024, v4")
    e("v_mov_b32 v5, v7")
    e("s_mov_b32 s30, 0x0000ffff"); e("s_mov_b32 s31, 0x0000ffff")
    e("s_waitcnt vmcnt(3)")
    sumsq(a,Q,12,13); allred(a,12,13,"v_add_f32",[32]); allred(a,3,13,"v_max_f32",[1,2,4,8,16,32])
    e("v_mul_f32 v12, v12, v3"); e("v_sqrt_f32 v12, v12"); e("s_nop 0"); e(f"v_mul_f32 v12, {f2u(1.002):#x}, v12")
    e(f"v_cmp_nge_f32 vcc, {f2u(THR):#x}, v12"); e("v_sub_f32 v12, 0, v12")
    for i in range(16): e(f"v_mov_b32 v{NC+i}, v12")
    stamp(a,1); e("s_waitcnt vmcnt(0)"); e("s_barrier"); stamp(a,2)
    e("s_mov_b32 s32, 0")
    e("s_cbranch_vccz k2_go")
    e("s_waitcnt vmcnt(0)"); e("s_barrier"); e("s_mov_b32 s32, 1")
    e("v_mov_b32 v12, 0xff800000"); e("v_mov_b32 v13, v7"); e("s_mov_b32 s33, 64")
    a.label("k2_mx")
    e(f"ds_read_b128 v[{KF[0]}:{KF[0]+3}], v13"); e("v_add_u32 v13, 2048, v13"); e("s_waitcnt lgkmcnt(0)")
    e(f"v_mfma_f32_32x32x16_bf16 v[{S[0]}:{S[0]+15}], v[{KF[0]}:{KF[0]+3}], v[{Q}:{Q+3}], 0"); e("s_nop 15")
    for i in range(8): e(f"v_max3_f32 v12, v12, v{S[0]+2*i}, v{S[0]+2*i+1}")
    e("s_sub_u32 s33, s33, 1"); e("s_cmp_lg_u32 s33, 0"); e("s_cbranch_scc1 k2_mx")
    allred(a,12,13,"v_max_f32",[32]); e("v_sub_f32 v12, 0, v12")
    for i in range(16): e(f"v_mov_b32 v{NC+i}, v12")
    a.label("k2_go")
    def rdK(i): e(f"ds_read_b128 v[{KF[i&1]}:{KF[i&1]+3}], v5 offset:{2048*i}")
    def rdV(i,g): e(f"ds_read_b128 v[{VF[i&1]+4*g}:{VF[i&1]+4*g+3}], v4 offset:{2048*i+512*g}")
    def mS(i): e(f"v_mfma_f32_32x32x16_bf16 v[{S[i&1]}:{S[i&1]+15}], v[{KF[i&1]}:{KF[i&1]+3}], v[{Q}:{Q+3}], v[{NC}:{NC+15}]")
    def mO(i,g): e(f"v_mfma_f32_32x32x16_bf16 v[{O}:{O+15}], v[{VF[i&1]+4*g}:{VF[i&1]+4*g+3}], v[{P+4*g}:{P+4*g+3}], v[{O}:{O+15}]")
    rdK(0); rdK(1); e("s_mov_b64 exec, s[30:31]"); rdV(0,0); rdV(0,1); e("s_mov_b64 exec, -1")
    for i in range(4): e(f"v_mov_b32 v{P+4+i}, 0")
    e("s_waitcnt lgkmcnt(3)"); mS(0); e("s_mov_b32 s33, 8"); e("s_setprio 1"); e("s_nop 10")
    a.label("k2_loop")
    for i in range(8):
        s=S[i&1]
        ex=lambda j: e(f"v_exp_f32 v{s+j}, v{s+j}")
        cv=lambda j: e(f"v_cvt_pk_bf16_f32 v{P+j}, v{s+2*j}, v{s+2*j+1}")
        ex(0); ex(1)
        mO(i-1,1)
        ex(2); ex(3); cv(0)
        e("s_waitcnt lgkmcnt(0)")
        mS(i+1)
        rdK(i+2); e("s_mov_b64 exec, s[30:31]"); rdV(i+1,0); rdV(i+1,1); e("s_mov_b64 exec, -1")
        ex(4); ex(5); cv(1); ex(6); ex(7); cv(2); ex(8); ex(9); cv(3); ex(10); ex(11); cv(4)
        mO(i,0)
        ex(12); ex(13); cv(5); ex(14); ex(15); cv(6)
        if i==7:
            e("v_add_u32 v4, 16384, v4"); e("v_add_u32 v5, 16384, v5")
        else: e("s_nop 0")
        cv(7)
    e("s_cmp_lg_u32 s32, 0"); e("s_cbranch_scc1 k2_nb")
    stamp(a,3); e("s_waitcnt vmcnt(0)"); e("s_barrier"); e("s_mov_b32 s32, 1"); stamp(a,4)
    a.label("k2_nb")
    e("s_sub_u32 s33, s33, 1"); e("s_cmp_lg_u32 s33, 0"); e("s_cbranch_scc1 k2_loop")
    mO(7,1); e("s_nop 15")
    e(f"v_rcp_f32 v12, v{O+8}"); e("s_mul_i32 s27, s24, 118"); e("s_add_u32 s27, s27, s26"); e("s_lshl_b32 s27, s27, 10"); e(f"s_add_u32 s27, s27, {OH}")
    for i in range(8): e(f"v_mul_f32 v{O+i}, v{O+i}, v12")
    for i in range(4): e(f"v_cvt_pk_bf16_f32 v{P+i}, v{O+2*i}, v{O+2*i+1}")
    e(f"buffer_store_dwordx4 v[{P}:{P+3}], v7, s[44:47], s27 offen")
    e("s_waitcnt lgkmcnt(0)")
    stamp(a,5); stamp(a,7,True); stamp_out(a,8,0,0); stamp_out(a,8,7,16)
    e("s_endpgm")
    a.label("k2_ffn")
    G=16; U=32; X=48; R=64; PD=8; XD=3
    e("s_sub_u32 s26, s3, 8")
    e("s_lshl_b32 s28, s26, 13"); e("s_lshl_b32 s29, s24, 15"); e("s_add_u32 s29, s29, s28"); e("s_add_u32 s28, s28, 131072")
    stamp(a,1); e("s_barrier"); stamp(a,2)
    e("s_lshl_b32 s38, s26, 10"); e("s_add_u32 s38, s38, 24576"); e(f"s_add_u32 s39, s38, {KV}")
    def kvr(n):
        for j in range(n):
            e("s_mov_b32 m0, s38"); e("s_add_u32 s38, s38, 4096")
            e("buffer_load_dwordx4 v7, s[44:47], s39 offen lds"); e("s_add_u32 s39, s39, 4096")
    kvr(26)
    for j in range(2):
        e("s_mov_b32 m0, s28"); e("s_add_u32 s28, s28, 4096")
        for i in range(4): e(f"buffer_load_dwordx4 v7, s[44:47], s29 offen offset:{1024*i} lds")
        e("s_add_u32 s29, s29, 4096")
    e("s_mul_i32 s27, s25, 11"); e("s_add_u32 s27, s27, s26")
    e("s_lshl_b32 s34, s27, 16"); e(f"s_add_u32 s34, s34, {WGU}")
    def ld(s):
        b=R+8*(s%PD)
        e(f"buffer_load_dwordx4 v[{b}:{b+3}], v7, s[44:47], s34 offen offset:{2048*(s&1)}")
        e(f"buffer_load_dwordx4 v[{b+4}:{b+7}], v7, s[44:47], s34 offen offset:{2048*(s&1)+1024}")
        if s&1: e(f"s_add_u32 s34, s34, {4096 if s%32!=31 else 4096+3*65536}")
    for s in range(PD): ld(s)
    e("buffer_load_dword v2, v7, s[44:47], s34 offen"); e("buffer_load_dword v3, v7, s[44:47], s34 offen")
    e("v_add_u32 v5, 0x20000, v7")
    e(f"s_mov_b32 s36, {f2u(-2.302208198):#x}"); e(f"v_mov_b32 v6, {f2u(-2.302208198*0.044715):#x}")
    e(f"s_setprio {FPRIO}")
    stamp(a,3); e(f"s_waitcnt vmcnt({2*PD+2})"); e("s_barrier"); stamp(a,4)
    a.label("k2_item")
    def rx(s): e(f"ds_read_b128 v[{X+4*(s%4)}:{X+4*(s%4)+3}], v5 offset:{1024*s}")
    for s in range(XD): rx(s)
    for s in range(32):
        if s+XD<32: rx(s+XD)
        e(f"s_waitcnt vmcnt({2*PD-2+(2 if s<PD else 0)}) lgkmcnt({min(XD,31-s)})")
        b=R+8*(s%PD); x=X+4*(s%4)
        e(f"v_mfma_f32_32x32x16_bf16 v[{G}:{G+15}], v[{b}:{b+3}], v[{x}:{x+3}], "+("0" if s==0 else f"v[{G}:{G+15}]"))
        e(f"v_mfma_f32_32x32x16_bf16 v[{U}:{U+15}], v[{b+4}:{b+7}], v[{x}:{x+3}], "+("0" if s==0 else f"v[{U}:{U+15}]"))
        ld(s+PD)
    e("s_mul_i32 s35, s24, 118"); e("s_lshl_b32 s37, s27, 1"); e("s_add_u32 s35, s35, s37"); e("s_add_u32 s35, s35, 32"); e("s_lshl_b32 s35, s35, 10"); e(f"s_add_u32 s35, s35, {OH}")
    e("s_nop 8")
    T=128
    for j0 in range(0,16,4):
        js=range(j0,j0+4)
        for j in js: e(f"v_mul_f32 v{T+j%4}, v{G+j}, v{G+j}")
        for j in js: e(f"v_fma_f32 v{T+j%4}, v{T+j%4}, v6, s36")
        for j in js: e(f"v_mul_f32 v{T+j%4}, v{T+j%4}, v{G+j}")
        for j in js: e(f"v_exp_f32 v{T+j%4}, v{T+j%4}"); e(f"v_mul_f32 v{G+j}, v{G+j}, v{U+j}")
        for j in js: e(f"v_add_f32 v{T+j%4}, 1.0, v{T+j%4}")
        for j in js: e(f"v_rcp_f32 v{T+j%4}, v{T+j%4}")
        e("s_nop 0")
        for j in js: e(f"v_mul_f32 v{G+j}, v{G+j}, v{T+j%4}")
        for j in (j0,j0+2): e(f"v_cvt_pk_bf16_f32 v{8+j//2}, v{G+j}, v{G+j+1}")
    e("buffer_store_dwordx4 v[8:11], v7, s[44:47], s35 offen"); e("buffer_store_dwordx4 v[12:15], v7, s[44:47], s35 offen offset:1024")
    e("s_add_u32 s26, s26, 4"); e("s_add_u32 s27, s27, 4")
    e("s_cmp_ge_u32 s26, 11"); e("s_cbranch_scc1 k2_fend")
    e("s_cmp_lt_u32 s27, 43"); e("s_cbranch_scc1 k2_item")
    a.label("k2_fend")
    e("s_waitcnt vmcnt(0)")
    stamp(a,5); stamp(a,7,True); stamp_out(a,8,8,8)
    a.label("k2_end")
    e("s_endpgm")
    return a.text(), 136
```

```python
from common import *
def k3():
    a=Asm('k3'); e=a.e
    e("s_cmp_ge_u32 s2, 256"); e("s_cbranch_scc1 k3_end")
    e("s_load_dwordx2 s[4:5], s[0:1], 0"); e("s_load_dwordx2 s[6:7], s[0:1], 72"); e("s_load_dwordx2 s[22:23], s[0:1], 88")
    e("v_lshrrev_b32 v1, 6, v0"); e("v_and_b32 v0, 63, v0"); e("s_nop 0")
    e("v_readfirstlane_b32 s3, v1")
    e("s_and_b32 s24, s2, 7"); e("s_lshl_b32 s24, s24, 2"); e("s_bfe_u32 s25, s2, 0x20003"); e("s_add_u32 s24, s24, s25")
    e("s_lshr_b32 s25, s2, 5")
    e("v_lshlrev_b32 v7, 4, v0"); e(f"v_add_u32 v6, {118*1024}, v7")
    e(f"s_mul_i32 s26, s25, {236*1024}"); e("s_lshl_b32 s28, s3, 10"); e("s_add_u32 s26, s26, s28"); e(f"s_add_u32 s26, s26, {W2}")
    e(f"s_mul_i32 s27, s24, {236*1024}"); e("s_add_u32 s27, s27, s28"); e(f"s_add_u32 s27, s27, {OH}")
    e("s_waitcnt lgkmcnt(0)")
    srd(a,44,22,WS_SIZE); srd(a,28,4,2097152); srd(a,32,6,2097152)
    ACC=16; R=80; PD=7; XR=8
    def ld(i):
        b=R+16*(i%PD)
        e(f"buffer_load_dwordx4 v[{b}:{b+3}], v7, s[44:47], s26 offen"); e(f"buffer_load_dwordx4 v[{b+8}:{b+11}], v7, s[44:47], s27 offen")
        e(f"buffer_load_dwordx4 v[{b+4}:{b+7}], v6, s[44:47], s26 offen"); e(f"buffer_load_dwordx4 v[{b+12}:{b+15}], v6, s[44:47], s27 offen")
        e("s_add_u32 s26, s26, 4096"); e("s_add_u32 s27, s27, 4096")
    e("s_lshl_b32 s36, s24, 1"); e("s_lshr_b32 s37, s3, 1"); e("s_add_u32 s36, s36, s37"); e("s_lshl_b32 s36, s36, 15")
    e("s_lshl_b32 s37, s25, 1"); e("s_and_b32 s38, s3, 1"); e("s_add_u32 s37, s37, s38"); e("s_lshl_b32 s37, s37, 6"); e("s_add_u32 s36, s36, s37")
    e("v_and_b32 v2, 31, v0"); e("v_lshrrev_b32 v3, 5, v0"); e("v_lshlrev_b32 v2, 10, v2"); e("v_lshl_add_u32 v2, v3, 3, v2")
    stamp(a,0); stamp(a,6,True)
    for i in range(PD): ld(i)
    def mm(i):
        b=R+16*(i%PD)
        for t in range(4):
            A=b+4*(t&1); B=b+8+4*(t>>1); c=ACC+16*t
            e(f"v_mfma_f32_32x32x16_bf16 v[{c}:{c+15}], v[{A}:{A+3}], v[{B}:{B+3}], "+("0" if i==0 else f"v[{c}:{c+15}]"))
    for i in range(29):
        rem=min(PD-1,29-i)
        e(f"s_waitcnt vmcnt({4*rem+(4 if i+PD>30 else 0)})")
        if i==0: stamp(a,1)
        mm(i)
        if i+PD<30: ld(i+PD)
        if i+PD==30:
            for q in range(4): e(f"buffer_load_dwordx2 v[{XR+2*q}:{XR+2*q+1}], v2, s[28:31], s36 offen offset:{16*q}")
    e("s_waitcnt vmcnt(4)"); e("s_cmp_ge_u32 s3, 2"); e("s_cbranch_scc1 k3_red")
    mm(29)
    a.label("k3_red")
    stamp(a,2)
    e("s_lshl_b32 s39, s3, 12"); e("v_add_u32 v4, s39, v7"); e("s_nop 15")
    for t in range(4):
        e(f"s_cmp_eq_u32 s3, {t}"); e(f"s_cbranch_scc1 k3_sk{t}")
        for q in range(4): e(f"ds_write_b128 v4, v[{ACC+16*t+4*q}:{ACC+16*t+4*q+3}] offset:{16384*t+1024*q}")
        e(f"s_branch k3_n{t}")
        a.label(f"k3_sk{t}")
        for q in range(16): e(f"v_mov_b32 v{R+64+q}, v{ACC+16*t+q}")
        a.label(f"k3_n{t}")
    e("s_waitcnt lgkmcnt(0)"); stamp(a,3); e("s_barrier"); stamp(a,4)
    e("s_lshl_b32 s39, s3, 14")
    for k in range(1,4):
        e(f"s_add_u32 s40, s3, {k}"); e("s_and_b32 s40, s40, 3"); e("s_lshl_b32 s40, s40, 12"); e("s_add_u32 s40, s40, s39"); e("v_add_u32 v5, s40, v7")
        for q in range(4): e(f"ds_read_b128 v[{R+16*(k-1)+4*q}:{R+16*(k-1)+4*q+3}], v5 offset:{1024*q}")
    F=R+64
    e("s_waitcnt vmcnt(0)")
    for q in range(8):
        e(f"v_lshlrev_b32 v1, 16, v{XR+q}"); e(f"v_add_f32 v{F+2*q}, v{F+2*q}, v1"); e(f"v_and_b32 v1, 0xffff0000, v{XR+q}"); e(f"v_add_f32 v{F+2*q+1}, v{F+2*q+1}, v1")
    for k in range(3):
        e(f"s_waitcnt lgkmcnt({8-4*k})")
        for q in range(16): e(f"v_add_f32 v{F+q}, v{F+q}, v{R+16*k+q}")
    for q in range(8): e(f"v_cvt_pk_bf16_f32 v{XR+q}, v{F+2*q}, v{F+2*q+1}")
    for q in range(4): e(f"buffer_store_dwordx2 v[{XR+2*q}:{XR+2*q+1}], v2, s[32:35], s36 offen offset:{16*q}")
    stamp(a,5); e("s_waitcnt vmcnt(0)"); stamp(a,7,True); stamp_out(a,8,0,0)
    a.label("k3_end")
    e("s_endpgm")
    return a.text(), 192
```

```python
from common import *
def k1():
    a=Asm('k1')
    e=a.e
    e("s_cmp_ge_u32 s2, 256"); e("s_cbranch_scc1 k1_end")
    e("s_load_dwordx8 s[4:11], s[0:1], 0")
    e("s_load_dwordx2 s[12:13], s[0:1], 32")
    e("s_load_dwordx4 s[16:19], s[0:1], 48")
    e("s_load_dwordx2 s[20:21], s[0:1], 64")
    e("s_load_dwordx2 s[22:23], s[0:1], 88")
    e("v_lshrrev_b32 v1, 6, v0"); e("v_and_b32 v0, 63, v0"); e("s_nop 0")
    e("v_readfirstlane_b32 s3, v1")
    e("s_and_b32 s24, s2, 7"); e("s_lshl_b32 s24, s24, 2"); e("s_bfe_u32 s25, s2, 0x20003"); e("s_add_u32 s24, s24, s25"); e("s_lshr_b32 s25, s2, 5")
    e("v_and_b32 v1, 3, v0"); e("v_and_b32 v2, 15, v0"); e("v_lshrrev_b32 v14, 4, v0")
    e("s_lshl_b32 s26, s24, 6"); e("s_lshl_b32 s27, s3, 2"); e("s_add_u32 s26, s26, s27"); e("s_lshl_b32 s26, s26, 10")
    e("v_lshlrev_b32 v3, 10, v14"); e("v_lshl_add_u32 v3, v2, 4, v3")
    e("s_waitcnt lgkmcnt(0)")
    srd(a,28,4,2097152); srd(a,32,6,524288); srd(a,36,8,16384); srd(a,40,10,16384); srd(a,44,22,WS_SIZE)
    stamp(a,0); stamp(a,6,True)
    for i in range(4): e(f"buffer_load_dwordx4 v[{16+4*i}:{19+4*i}], v3, s[28:31], s26 offen offset:{256*i}")
    e("v_lshrrev_b32 v4, 3, v0"); e("v_and_b32 v5, 7, v0"); e("v_and_b32 v6, 16, v0"); e("v_lshrrev_b32 v6, 2, v6")
    e("v_xor_b32 v5, v5, v6"); e("v_lshlrev_b32 v4, 10, v4"); e("v_lshl_add_u32 v4, v5, 4, v4")
    e("s_lshl_b32 s48, s3, 15"); e("s_lshl_b32 s49, s25, 7"); e("s_add_u32 s48, s48, s49")
    e("s_lshl_b32 s49, s3, 12"); e("s_add_u32 s49, s49, 67584")
    for i in range(4):
        e("s_mov_b32 m0, s49"); e("s_add_u32 s49, s49, 1024")
        e("buffer_load_dwordx4 v4, s[32:35], s48 offen lds"); e("s_add_u32 s48, s48, 8192")
    e("v_lshlrev_b32 v7, 4, v0")
    e("s_cmp_ge_u32 s25, 4"); e("s_cbranch_scc1 k1_nokv")
    e("s_lshl_b32 s48, s3, 10"); e("s_add_u32 s49, s48, 133120"); e("s_mov_b32 m0, s49")
    e("s_cmp_ge_u32 s25, 2"); e("s_cbranch_scc1 k1_ldv")
    e("buffer_load_dwordx4 v7, s[36:39], s48 offen lds"); e("s_branch k1_nokv")
    a.label("k1_ldv")
    e("buffer_load_dwordx4 v7, s[40:43], s48 offen lds")
    a.label("k1_nokv")
    e("s_mov_b32 s50, 0")
    e("s_cmp_lt_u32 s3, 8"); e("s_cbranch_scc1 k1_ln")
    e("s_sub_u32 s51, s3, 8"); e("s_lshl_b32 s51, s51, 8"); e("s_add_u32 s51, s51, s2")
    e("s_cmp_ge_u32 s51, 580"); e("s_cbranch_scc1 k1_ln")
    e("s_mov_b32 s50, 1")
    e("s_cmp_ge_u32 s51, 344"); e("s_cbranch_scc1 k1_w2")
    e("s_mov_b32 s52, 0"); srd(a,56,16,1409024)
    e("s_cmp_lt_u32 s51, 172"); e("s_cbranch_scc1 k1_gu")
    e("s_sub_u32 s51, s51, 172"); e("s_mov_b32 s52, 1024"); srd(a,56,18,1409024)
    a.label("k1_gu")
    e("s_lshl_b32 s51, s51, 6"); e("v_add_u32 v8, s51, v0")
    e("v_mul_u32_u24 v9, 24386, v8"); e("v_lshrrev_b32 v9, 22, v9")
    e("v_mul_u32_u24 v10, 172, v9"); e("v_sub_u32 v10, v8, v10")
    e("v_mul_u32_u24 v11, 22016, v9"); e("v_lshl_add_u32 v11, v10, 4, v11")
    e("v_lshrrev_b32 v12, 2, v10"); e("v_lshlrev_b32 v12, 16, v12")
    e("v_lshrrev_b32 v13, 1, v9"); e("v_lshl_add_u32 v12, v13, 11, v12")
    e("v_and_b32 v13, 1, v9"); e("v_lshl_add_u32 v12, v13, 9, v12")
    e("v_and_b32 v13, 3, v10"); e("v_lshl_add_u32 v12, v13, 7, v12")
    e(f"s_add_u32 s52, s52, {WGU}")
    for j in range(8): e(f"s_mov_b32 s{60+j}, {j*2752}")
    e("s_branch k1_rl")
    a.label("k1_w2")
    e("s_sub_u32 s51, s51, 344"); e("s_mov_b32 s53, 0"); srd(a,56,12,524288)
    e("s_cmp_lt_u32 s51, 64"); e("s_cbranch_scc1 k1_w2b")
    e("s_sub_u32 s51, s51, 64"); e("s_mov_b32 s53, 32"); srd(a,56,20,1409024)
    a.label("k1_w2b")
    e("s_lshr_b32 s54, s51, 1"); e("s_and_b32 s55, s51, 1")
    e("s_lshl_b32 s52, s54, 14"); e("s_lshl_b32 s51, s55, 12"); e("s_add_u32 s51, s51, s52")
    e("v_add_u32 v11, s51, v7")
    e("s_add_u32 s53, s53, s54"); e("s_lshl_b32 s53, s53, 10"); e("s_lshl_b32 s55, s55, 9"); e("s_add_u32 s52, s53, s55")
    e(f"s_add_u32 s52, s52, {W2}")
    e("v_lshrrev_b32 v12, 2, v0"); e(f"v_mul_u32_u24 v12, {118*1024}, v12")
    e("v_and_b32 v13, 3, v0"); e("v_lshl_add_u32 v12, v13, 7, v12")
    for j in range(8): e(f"s_mov_b32 s{60+j}, {(j&3)*1024+(j>>2)*8192}")
    a.label("k1_rl")
    for j in range(8): e(f"buffer_load_dwordx4 v[{64+4*j}:{67+4*j}], v11, s[56:59], s{60+j} offen")
    e("s_waitcnt vmcnt(12)"); e("s_branch k1_ln2")
    a.label("k1_ln")
    e("s_waitcnt vmcnt(4)")
    a.label("k1_ln2")
    stamp(a,1)
    for i in range(16):
        e(f"v_lshlrev_b32 v{32+2*i}, 16, v{16+i}"); e(f"v_and_b32 v{33+2*i}, 0xffff0000, v{16+i}")
    def tree(dst, regs, op):
        pass
    for i in range(2): e(f"v_pk_add_f32 v[{16+2*i}:{17+2*i}], v[{32+2*i}:{33+2*i}], v[{36+2*i}:{37+2*i}]")
    for j in range(2,8):
        for i in range(2): e(f"v_pk_add_f32 v[{16+2*i}:{17+2*i}], v[{16+2*i}:{17+2*i}], v[{32+4*j+2*i}:{33+4*j+2*i}]")
    e("v_add_f32 v16, v16, v17"); e("v_add_f32 v18, v18, v19"); e("v_add_f32 v16, v16, v18")
    allred(a,16,17,"v_add_f32",[1,2,4,8])
    e("v_mul_f32 v16, 0x3b000000, v16"); e("v_sub_f32 v18, 0, v16"); e("v_sub_f32 v19, 0, v16")
    for j in range(16):
        t=24+2*(j%4); c=20+2*(j%2)
        e(f"v_pk_add_f32 v[{t}:{t+1}], v[{32+2*j}:{33+2*j}], v[18:19]")
        e(f"v_pk_mul_f32 v[{c}:{c+1}], v[{t}:{t+1}], v[{t}:{t+1}]" if j<2 else f"v_pk_fma_f32 v[{c}:{c+1}], v[{t}:{t+1}], v[{t}:{t+1}], v[{c}:{c+1}]")
    e("v_add_f32 v20, v20, v21"); e("v_add_f32 v22, v22, v23"); e("v_add_f32 v20, v20, v22")
    allred(a,20,21,"v_add_f32",[1,2,4,8])
    e("v_mul_f32 v20, 0x3b000000, v20")
    def rb(r): e(f"v_cvt_pk_bf16_f32 v{r}, v{r}, v{r}"); e(f"v_and_b32 v{r}, 0xffff0000, v{r}")
    rb(16); rb(20); e("v_add_f32 v20, 0x3727c5ac, v20"); rb(20); e("v_sqrt_f32 v20, v20"); e("s_nop 0"); rb(20)
    e("v_rcp_f32 v20, v20"); e("s_nop 0"); e("v_mul_f32 v22, v16, v20"); e("v_sub_f32 v22, 0, v22"); e("v_mov_b32 v21, v20"); e("v_mov_b32 v23, v22")
    for j in range(16): e(f"v_pk_fma_f32 v[{32+2*j}:{33+2*j}], v[{32+2*j}:{33+2*j}], v[20:21], v[22:23]")
    for i in range(16): e(f"v_cvt_pk_bf16_f32 v{16+i}, v{32+2*i}, v{33+2*i}")
    e("s_lshr_b32 s48, s3, 3"); e("s_mul_i32 s48, s48, 33792"); e("s_and_b32 s49, s3, 7"); e("s_lshl_b32 s49, s49, 6"); e("s_add_u32 s48, s48, s49")
    e("v_mul_u32_u24 v4, 528, v2"); e("v_lshl_add_u32 v4, v14, 4, v4"); e("v_add_u32 v4, s48, v4")
    for i in range(4): e(f"ds_write_b128 v4, v[{16+4*i}:{19+4*i}] offset:{8448*i}")
    e("v_lshrrev_b32 v15, 5, v0"); e("v_lshl_add_u32 v15, v15, 4, v7")
    stamp(a,2); e("s_cmp_lg_u32 s50, 0"); e("s_cbranch_scc1 k1_bw"); e("s_waitcnt vmcnt(0)"); a.label("k1_bw"); e("s_waitcnt vmcnt(8) lgkmcnt(0)"); stamp(a,3); e("s_barrier"); stamp(a,4)
    e("s_cmp_ge_u32 s3, 8"); e("s_cbranch_scc1 k1_rfin")
    e("s_cmp_ge_u32 s3, 4"); e("s_cbranch_scc1 k1_aux")
    def trlane():
        e("v_bfe_u32 v8, v0, 2, 2"); e("v_bfe_u32 v9, v0, 4, 1"); e("v_lshrrev_b32 v10, 5, v0"); e("v_lshl_add_u32 v10, v10, 3, v8")
    trlane()
    e("s_and_b32 s48, s3, 1"); e("s_lshr_b32 s49, s3, 1")
    e("s_lshl_b32 s51, s48, 6"); e("v_lshlrev_b32 v11, 3, v1"); e("v_lshl_add_u32 v11, v9, 5, v11"); e("v_add_u32 v11, s51, v11")
    e("v_and_b32 v12, 8, v0"); e("v_lshlrev_b32 v12, 3, v12"); e("v_xor_b32 v11, v11, v12")
    e("v_lshl_add_u32 v11, v10, 7, v11"); e("v_add_u32 v11, 67584, v11")
    e("s_mul_i32 s51, s49, 33792"); e("v_add_u32 v12, s51, v15")
    def chain(stepA, qoff, swap):
        for i in range(16): e(f"v_mov_b32 v{32+i}, 0")
        D=4
        def rd(s):
            b=64+8*(s%D)
            e(f"ds_read_b64_tr_b16 v[{b}:{b+1}], v11 offset:{s*stepA}"); e(f"ds_read_b64_tr_b16 v[{b+2}:{b+3}], v11 offset:{s*stepA+qoff}")
            e(f"ds_read_b128 v[{b+4}:{b+7}], v12 offset:{s*1056}")
        for s in range(D-1): rd(s)
        for s in range(32):
            if s+D-1<32: rd(s+D-1)
            e(f"s_waitcnt lgkmcnt({3*min(D-1,31-s)})")
            b=64+8*(s%D); A=f"v[{b}:{b+3}]"; B=f"v[{b+4}:{b+7}]"
            if swap: A,B=B,A
            e(f"v_mfma_f32_32x32x16_bf16 v[32:47], {A}, {B}, v[32:47]")
        e("s_nop 15")
    chain(2048,512,False)
    e(f"s_mov_b32 s51, {f2u(0.25*1.4426950408889634):#x}")
    for i in range(16): e(f"v_mul_f32 v{32+i}, s51, v{32+i}")
    for i in range(8): e(f"v_cvt_pk_bf16_f32 v{48+i}, v{32+2*i}, v{33+2*i}")
    e("s_lshl_b32 s51, s24, 1"); e("s_add_u32 s51, s51, s49"); e("s_lshl_b32 s51, s51, 5"); e("s_lshl_b32 s52, s25, 2"); e("s_add_u32 s51, s51, s52")
    e("s_lshl_b32 s52, s48, 1"); e("s_add_u32 s51, s51, s52"); e("s_lshl_b32 s51, s51, 10"); e(f"s_add_u32 s51, s51, {QF}")
    e("buffer_store_dwordx4 v[48:51], v7, s[44:47], s51 offen"); e("buffer_store_dwordx4 v[52:55], v7, s[44:47], s51 offen offset:1024")
    stamp(a,5); e("s_waitcnt vmcnt(0)"); stamp(a,7,True); stamp_out(a,8,0,0)
    e("s_endpgm")
    a.label("k1_aux")
    e("s_cmp_ge_u32 s25, 4"); e("s_cbranch_scc1 k1_xn")
    e("s_cmp_lg_u32 s3, 4"); e("s_cbranch_scc1 k1_end")
    trlane()
    e("v_lshlrev_b32 v11, 3, v1"); e("v_lshl_add_u32 v11, v10, 5, v11"); e("v_add_u32 v11, 133120, v11")
    e("s_and_b32 s49, s25, 1"); e("s_mul_i32 s51, s49, 33792"); e("v_add_u32 v12, s51, v15")
    e("s_lshl_b32 s51, s24, 1"); e("s_add_u32 s49, s51, s49")
    e("s_lshl_b32 s51, s49, 11"); e(f"s_add_u32 s51, s51, {KV}")
    e("s_cmp_ge_u32 s25, 2"); e("s_cbranch_scc1 k1_v")
    chain(512,128,False)
    for i in range(4): e(f"v_cvt_pk_bf16_f32 v{48+i}, v{32+2*i}, v{33+2*i}")
    e("buffer_store_dwordx4 v[48:51], v7, s[44:47], s51 offen")
    sumsq(a,48,52,53)
    allred(a,52,53,"v_add_f32",[32]); allred(a,52,53,"v_max_f32",[1,2,4,8,16])
    e("s_lshl_b32 s49, s49, 2"); e(f"s_add_u32 s49, s49, {KMAX}"); e("v_mov_b32 v54, 0")
    e("s_mov_b64 exec, 1"); e("buffer_store_dword v52, v54, s[44:47], s49 offen")
    e("s_endpgm")
    a.label("k1_v")
    chain(512,128,True)
    for i in range(8): e(f"v_cvt_pk_bf16_f32 v{48+i}, v{32+2*i}, v{33+2*i}")
    e("v_and_b32 v8, 15, v0"); e("v_lshrrev_b32 v9, 5, v0"); e("v_lshl_add_u32 v8, v9, 4, v8"); e("v_lshlrev_b32 v8, 4, v8")
    e("s_mov_b32 exec_lo, 0xffff0000"); e("s_mov_b32 exec_hi, 0xffff0000")
    e("buffer_store_dwordx4 v[48:51], v8, s[44:47], s51 offen offset:1024"); e("buffer_store_dwordx4 v[52:55], v8, s[44:47], s51 offen offset:1536")
    e("s_endpgm")
    a.label("k1_xn")
    e("s_sub_u32 s48, s25, 4"); e("s_lshl_b32 s48, s48, 2"); e("s_add_u32 s48, s48, s3"); e("s_sub_u32 s48, s48, 4"); e("s_mul_i32 s49, s48, 4224"); e("s_lshl_b32 s48, s48, 12")
    e("v_add_u32 v8, s49, v15")
    for i in range(4): e(f"ds_read_b128 v[{16+4*i}:{19+4*i}], v8 offset:{1056*i}")
    e("s_lshl_b32 s49, s24, 16"); e("s_add_u32 s48, s48, s49")
    for i in range(4):
        e(f"s_waitcnt lgkmcnt({3-i})"); e(f"buffer_store_dwordx4 v[{16+4*i}:{19+4*i}], v7, s[44:47], s48 offen offset:{1024*i}")
    e("s_endpgm")
    a.label("k1_rfin")
    e("s_cmp_eq_u32 s50, 0"); e("s_cbranch_scc1 k1_end")
    e("s_mov_b32 s48, 0x05040100"); e("s_mov_b32 s49, 0x07060302"); e("s_waitcnt vmcnt(0)")
    for c in range(8):
        for p in range(4): e(f"v_perm_b32 v{16+4*c+p}, v{64+4*(2*p+1)+(c>>1)}, v{64+4*(2*p)+(c>>1)}, s{48+(c&1)}")
        e(f"buffer_store_dwordx4 v[{16+4*c}:{19+4*c}], v12, s[44:47], s52 offen offset:{16*c}")
    stamp(a,5); e("s_waitcnt vmcnt(0)"); stamp(a,7,True); stamp_out(a,8,8,8)
    a.label("k1_end")
    e("s_endpgm")
    return a.text(), 96
```

```python
from common import *
import os
THR=40.0
FPRIO=int(os.environ.get('FPRIO','0'))
def k2():
    a=Asm('k2'); e=a.e
    e("s_cmp_ge_u32 s2, 256"); e("s_cbranch_scc1 k2_end")
    e("s_load_dwordx2 s[22:23], s[0:1], 88")
    e("v_lshrrev_b32 v1, 6, v0"); e("v_and_b32 v0, 63, v0"); e("s_nop 0")
    e("v_readfirstlane_b32 s3, v1")
    e("s_lshr_b32 s24, s2, 2"); e("s_and_b32 s25, s2, 3")
    e("v_lshlrev_b32 v7, 4, v0")
    e("s_waitcnt lgkmcnt(0)")
    srd(a,44,22,WS_SIZE)
    stamp(a,0); stamp(a,6,True)
    e("s_cmp_ge_u32 s3, 8"); e("s_cbranch_scc1 k2_ffn")
    Q=8; NC=16; S=[32,48]; O=64; P=80; KF=[88,92]; VF=[96,104]
    e("s_lshl_b32 s26, s25, 3"); e("s_add_u32 s26, s26, s3")
    e("s_lshl_b32 s27, s24, 5"); e("s_add_u32 s27, s27, s26"); e("s_lshl_b32 s27, s27, 10"); e(f"s_add_u32 s27, s27, {QF}")
    e(f"buffer_load_dwordx4 v[{Q}:{Q+3}], v7, s[44:47], s27 offen")
    e("v_lshlrev_b32 v2, 2, v0"); e(f"s_mov_b32 s27, {KMAX}")
    e("buffer_load_dword v3, v2, s[44:47], s27 offen")
    e("s_mul_i32 s28, s3, 3072"); e("s_mov_b32 m0, s28"); e(f"s_add_u32 s29, s28, {KV}")
    for i in range(3): e(f"buffer_load_dwordx4 v7, s[44:47], s29 offen offset:{1024*i} lds")
    e("v_and_b32 v4, 27, v0"); e("v_cmp_eq_u32 vcc, 16, v4"); e("v_mov_b32 v5, 0x3f803f80"); e("v_mov_b32 v6, 0")
    e("v_cndmask_b32 v5, v6, v5, vcc")
    for i in range(16): e(f"v_mov_b32 v{VF[0]+i}, v5")
    for i in range(16): e(f"v_mov_b32 v{O+i}, 0")
    e("v_and_b32 v4, 15, v0"); e("v_lshrrev_b32 v5, 5, v0"); e("v_lshl_add_u32 v4, v5, 4, v4"); e("v_lshlrev_b32 v4, 4, v4"); e("v_add_u32 v4, 1024, v4")
    e("v_mov_b32 v5, v7")
    e("s_mov_b32 s30, 0x0000ffff"); e("s_mov_b32 s31, 0x0000ffff")
    e("s_waitcnt vmcnt(3)")
    sumsq(a,Q,12,13); allred(a,12,13,"v_add_f32",[32]); allred(a,3,13,"v_max_f32",[1,2,4,8,16,32])
    e("v_mul_f32 v12, v12, v3"); e("v_sqrt_f32 v12, v12"); e("s_nop 0"); e(f"v_mul_f32 v12, {f2u(1.002):#x}, v12")
    e(f"v_cmp_nge_f32 vcc, {f2u(THR):#x}, v12"); e("v_sub_f32 v12, 0, v12")
    for i in range(16): e(f"v_mov_b32 v{NC+i}, v12")
    stamp(a,1); e("s_waitcnt vmcnt(0)"); e("s_barrier"); stamp(a,2)
    e("s_mov_b32 s32, 0x140")
    e("s_cbranch_vccz k2_go")
    e("s_barrier"); e("s_barrier"); e("s_mov_b32 s32, 0")
    e("v_mov_b32 v12, 0xff800000"); e("v_mov_b32 v13, v7"); e("s_mov_b32 s33, 64")
    a.label("k2_mx")
    e(f"ds_read_b128 v[{KF[0]}:{KF[0]+3}], v13"); e("v_add_u32 v13, 2048, v13"); e("s_waitcnt lgkmcnt(0)")
    e(f"v_mfma_f32_32x32x16_bf16 v[{S[0]}:{S[0]+15}], v[{KF[0]}:{KF[0]+3}], v[{Q}:{Q+3}], 0"); e("s_nop 15")
    for i in range(8): e(f"v_max3_f32 v12, v12, v{S[0]+2*i}, v{S[0]+2*i+1}")
    e("s_sub_u32 s33, s33, 1"); e("s_cmp_lg_u32 s33, 0"); e("s_cbranch_scc1 k2_mx")
    allred(a,12,13,"v_max_f32",[32]); e("v_sub_f32 v12, 0, v12")
    for i in range(16): e(f"v_mov_b32 v{NC+i}, v12")
    a.label("k2_go")
    def rdK(i): e(f"ds_read_b128 v[{KF[i&1]}:{KF[i&1]+3}], v5 offset:{2048*i}")
    def rdV(i,g): e(f"ds_read_b128 v[{VF[i&1]+4*g}:{VF[i&1]+4*g+3}], v4 offset:{2048*i+512*g}")
    def mS(i): e(f"v_mfma_f32_32x32x16_bf16 v[{S[i&1]}:{S[i&1]+15}], v[{KF[i&1]}:{KF[i&1]+3}], v[{Q}:{Q+3}], v[{NC}:{NC+15}]")
    def mO(i,g): e(f"v_mfma_f32_32x32x16_bf16 v[{O}:{O+15}], v[{VF[i&1]+4*g}:{VF[i&1]+4*g+3}], v[{P+4*g}:{P+4*g+3}], v[{O}:{O+15}]")
    rdK(0); rdK(1); e("s_mov_b64 exec, s[30:31]"); rdV(0,0); rdV(0,1); e("s_mov_b64 exec, -1")
    for i in range(4): e(f"v_mov_b32 v{P+4+i}, 0")
    e("s_waitcnt lgkmcnt(3)"); mS(0); e("s_mov_b32 s33, 8"); e("s_setprio 1"); e("s_nop 10")
    a.label("k2_loop")
    for i in range(8):
        s=S[i&1]
        ex=lambda j: e(f"v_exp_f32 v{s+j}, v{s+j}")
        cv=lambda j: e(f"v_cvt_pk_bf16_f32 v{P+j}, v{s+2*j}, v{s+2*j+1}")
        ex(0); ex(1)
        mO(i-1,1)
        ex(2); ex(3); cv(0)
        e("s_waitcnt lgkmcnt(0)")
        mS(i+1)
        rdK(i+2); e("s_mov_b64 exec, s[30:31]"); rdV(i+1,0); rdV(i+1,1); e("s_mov_b64 exec, -1")
        ex(4); ex(5); cv(1); ex(6); ex(7); cv(2); ex(8); ex(9); cv(3); ex(10); ex(11); cv(4)
        mO(i,0)
        ex(12); ex(13); cv(5); ex(14); ex(15); cv(6)
        if i==7:
            e("v_add_u32 v4, 16384, v4"); e("v_add_u32 v5, 16384, v5")
        else: e("s_nop 0")
        cv(7)
    e("s_bitcmp1_b32 s32, s33"); e("s_cbranch_scc0 k2_nb")
    stamp(a,3); e("s_barrier"); stamp(a,4)
    a.label("k2_nb")
    e("s_sub_u32 s33, s33, 1"); e("s_cmp_lg_u32 s33, 0"); e("s_cbranch_scc1 k2_loop")
    mO(7,1); e("s_nop 15")
    e(f"v_rcp_f32 v12, v{O+8}"); e("s_mul_i32 s27, s24, 118"); e("s_add_u32 s27, s27, s26"); e("s_lshl_b32 s27, s27, 10"); e(f"s_add_u32 s27, s27, {OH}")
    for i in range(8): e(f"v_mul_f32 v{O+i}, v{O+i}, v12")
    for i in range(4): e(f"v_cvt_pk_bf16_f32 v{P+i}, v{O+2*i}, v{O+2*i+1}")
    e(f"buffer_store_dwordx4 v[{P}:{P+3}], v7, s[44:47], s27 offen")
    e("s_waitcnt lgkmcnt(0)")
    stamp(a,5); stamp(a,7,True); stamp_out(a,8,0,0); stamp_out(a,8,7,16)
    e("s_endpgm")
    a.label("k2_ffn")
    G=16; U=32; X=48; R=64; PD=8; XD=3
    e("s_sub_u32 s26, s3, 8")
    e("s_lshl_b32 s28, s26, 13"); e("s_lshl_b32 s29, s24, 15"); e("s_add_u32 s29, s29, s28"); e("s_add_u32 s28, s28, 131072")
    stamp(a,1); e("s_barrier"); stamp(a,2)
    e("s_lshl_b32 s38, s26, 10"); e("s_add_u32 s38, s38, 24576"); e(f"s_add_u32 s39, s38, {KV}")
    def kvr(n):
        for j in range(n):
            e("s_mov_b32 m0, s38"); e("s_add_u32 s38, s38, 4096")
            e("buffer_load_dwordx4 v7, s[44:47], s39 offen lds"); e("s_add_u32 s39, s39, 4096")
    kvr(8)
    for j in range(2):
        e("s_mov_b32 m0, s28"); e("s_add_u32 s28, s28, 4096")
        for i in range(4): e(f"buffer_load_dwordx4 v7, s[44:47], s29 offen offset:{1024*i} lds")
        e("s_add_u32 s29, s29, 4096")
    e("s_mul_i32 s27, s25, 11"); e("s_add_u32 s27, s27, s26")
    e("s_lshl_b32 s34, s27, 16"); e(f"s_add_u32 s34, s34, {WGU}")
    def ld(s):
        b=R+8*(s%PD)
        e(f"buffer_load_dwordx4 v[{b}:{b+3}], v7, s[44:47], s34 offen offset:{2048*(s&1)}")
        e(f"buffer_load_dwordx4 v[{b+4}:{b+7}], v7, s[44:47], s34 offen offset:{2048*(s&1)+1024}")
        if s&1: e(f"s_add_u32 s34, s34, {4096 if s%32!=31 else 4096+3*65536}")
    for s in range(PD): ld(s)
    e("buffer_load_dword v2, v7, s[44:47], s34 offen"); e("buffer_load_dword v3, v7, s[44:47], s34 offen")
    e("v_add_u32 v5, 0x20000, v7")
    e(f"s_mov_b32 s36, {f2u(-2.302208198):#x}"); e(f"v_mov_b32 v6, {f2u(-2.302208198*0.044715):#x}")
    e(f"s_setprio {FPRIO}")
    stamp(a,3); e(f"s_waitcnt vmcnt({2*PD+2})"); e("s_barrier"); kvr(18); e("s_mov_b32 s32, 0")
    a.label("k2_item")
    def rx(s): e(f"ds_read_b128 v[{X+4*(s%4)}:{X+4*(s%4)+3}], v5 offset:{1024*s}")
    for s in range(XD): rx(s)
    for s in range(32):
        if s+XD<32: rx(s+XD)
        e(f"s_waitcnt vmcnt({2*PD-2+(2 if s<PD else 0)}) lgkmcnt({min(XD,31-s)})")
        b=R+8*(s%PD); x=X+4*(s%4)
        e(f"v_mfma_f32_32x32x16_bf16 v[{G}:{G+15}], v[{b}:{b+3}], v[{x}:{x+3}], "+("0" if s==0 else f"v[{G}:{G+15}]"))
        e(f"v_mfma_f32_32x32x16_bf16 v[{U}:{U+15}], v[{b+4}:{b+7}], v[{x}:{x+3}], "+("0" if s==0 else f"v[{U}:{U+15}]"))
        ld(s+PD)
    e("s_mul_i32 s35, s24, 118"); e("s_lshl_b32 s37, s27, 1"); e("s_add_u32 s35, s35, s37"); e("s_add_u32 s35, s35, 32"); e("s_lshl_b32 s35, s35, 10"); e(f"s_add_u32 s35, s35, {OH}")
    e("s_nop 8")
    T=128
    for j0 in range(0,16,4):
        js=range(j0,j0+4)
        for j in js: e(f"v_mul_f32 v{T+j%4}, v{G+j}, v{G+j}")
        for j in js: e(f"v_fma_f32 v{T+j%4}, v{T+j%4}, v6, s36")
        for j in js: e(f"v_mul_f32 v{T+j%4}, v{T+j%4}, v{G+j}")
        for j in js: e(f"v_exp_f32 v{T+j%4}, v{T+j%4}"); e(f"v_mul_f32 v{G+j}, v{G+j}, v{U+j}")
        for j in js: e(f"v_add_f32 v{T+j%4}, 1.0, v{T+j%4}")
        for j in js: e(f"v_rcp_f32 v{T+j%4}, v{T+j%4}")
        e("s_nop 0")
        for j in js: e(f"v_mul_f32 v{G+j}, v{G+j}, v{T+j%4}")
        for j in (j0,j0+2): e(f"v_cvt_pk_bf16_f32 v{8+j//2}, v{G+j}, v{G+j+1}")
    e("buffer_store_dwordx4 v[8:11], v7, s[44:47], s35 offen"); e("buffer_store_dwordx4 v[12:15], v7, s[44:47], s35 offen offset:1024")
    e("s_cmp_lg_u32 s32, 0"); e("s_cbranch_scc1 k2_fnb")
    stamp(a,4); e("s_barrier"); e("s_mov_b32 s32, 1")
    a.label("k2_fnb")
    e("s_add_u32 s26, s26, 4"); e("s_add_u32 s27, s27, 4")
    e("s_cmp_ge_u32 s26, 11"); e("s_cbranch_scc1 k2_fend")
    e("s_cmp_lt_u32 s27, 43"); e("s_cbranch_scc1 k2_item")
    a.label("k2_fend")
    e("s_waitcnt vmcnt(0)")
    stamp(a,5); stamp(a,7,True); stamp_out(a,8,8,8)
    a.label("k2_end")
    e("s_endpgm")
    return a.text(), 136
```

```python
from common import *
import os
THR=40.0
FPRIO=int(os.environ.get('FPRIO','0'))
def k2():
    a=Asm('k2'); e=a.e
    e("s_cmp_ge_u32 s2, 256"); e("s_cbranch_scc1 k2_end")
    e("s_load_dwordx2 s[22:23], s[0:1], 88")
    e("v_lshrrev_b32 v1, 6, v0"); e("v_and_b32 v0, 63, v0"); e("s_nop 0")
    e("v_readfirstlane_b32 s3, v1")
    e("s_lshr_b32 s24, s2, 2"); e("s_and_b32 s25, s2, 3")
    e("v_lshlrev_b32 v7, 4, v0")
    e("s_waitcnt lgkmcnt(0)")
    srd(a,44,22,WS_SIZE)
    stamp(a,0); stamp(a,6,True)
    e("s_cmp_ge_u32 s3, 8"); e("s_cbranch_scc1 k2_ffn")
    Q=8; NC=16; S=[32,48]; O=64; P=80; KF=[88,92]; VF=[96,104]
    e("s_lshl_b32 s26, s25, 3"); e("s_add_u32 s26, s26, s3")
    e("s_lshl_b32 s27, s24, 5"); e("s_add_u32 s27, s27, s26"); e("s_lshl_b32 s27, s27, 10"); e(f"s_add_u32 s27, s27, {QF}")
    e(f"buffer_load_dwordx4 v[{Q}:{Q+3}], v7, s[44:47], s27 offen")
    e("v_lshlrev_b32 v2, 2, v0"); e(f"s_mov_b32 s27, {KMAX}")
    e("buffer_load_dword v3, v2, s[44:47], s27 offen")
    e("s_mul_i32 s28, s3, 3072"); e("s_mov_b32 m0, s28"); e(f"s_add_u32 s29, s28, {KV}")
    for i in range(3): e(f"buffer_load_dwordx4 v7, s[44:47], s29 offen offset:{1024*i} lds")
    e("v_and_b32 v4, 27, v0"); e("v_cmp_eq_u32 vcc, 16, v4"); e("v_mov_b32 v5, 0x3f803f80"); e("v_mov_b32 v6, 0")
    e("v_cndmask_b32 v5, v6, v5, vcc")
    for i in range(16): e(f"v_mov_b32 v{VF[0]+i}, v5")
    for i in range(16): e(f"v_mov_b32 v{O+i}, 0")
    e("v_and_b32 v4, 15, v0"); e("v_lshrrev_b32 v5, 5, v0"); e("v_lshl_add_u32 v4, v5, 4, v4"); e("v_lshlrev_b32 v4, 4, v4"); e("v_add_u32 v4, 1024, v4")
    e("v_mov_b32 v5, v7")
    e("s_mov_b32 s30, 0x0000ffff"); e("s_mov_b32 s31, 0x0000ffff")
    e("s_waitcnt vmcnt(3)")
    sumsq(a,Q,12,13); allred(a,12,13,"v_add_f32",[32]); allred(a,3,13,"v_max_f32",[1,2,4,8,16,32])
    e("v_mul_f32 v12, v12, v3"); e("v_sqrt_f32 v12, v12"); e("s_nop 0"); e(f"v_mul_f32 v12, {f2u(1.002):#x}, v12")
    e(f"v_cmp_nge_f32 vcc, {f2u(THR):#x}, v12"); e("v_sub_f32 v12, 0, v12")
    for i in range(16): e(f"v_mov_b32 v{NC+i}, v12")
    stamp(a,1); e("s_waitcnt vmcnt(0)"); e("s_barrier"); stamp(a,2)
    e("s_mov_b32 s32, 0x140")
    e("s_cbranch_vccz k2_go")
    e("s_barrier"); e("s_barrier"); e("s_mov_b32 s32, 0")
    e("v_mov_b32 v12, 0xff800000"); e("v_mov_b32 v13, v7"); e("s_mov_b32 s33, 64")
    a.label("k2_mx")
    e(f"ds_read_b128 v[{KF[0]}:{KF[0]+3}], v13"); e("v_add_u32 v13, 2048, v13"); e("s_waitcnt lgkmcnt(0)")
    e(f"v_mfma_f32_32x32x16_bf16 v[{S[0]}:{S[0]+15}], v[{KF[0]}:{KF[0]+3}], v[{Q}:{Q+3}], 0"); e("s_nop 15")
    for i in range(8): e(f"v_max3_f32 v12, v12, v{S[0]+2*i}, v{S[0]+2*i+1}")
    e("s_sub_u32 s33, s33, 1"); e("s_cmp_lg_u32 s33, 0"); e("s_cbranch_scc1 k2_mx")
    allred(a,12,13,"v_max_f32",[32]); e("v_sub_f32 v12, 0, v12")
    for i in range(16): e(f"v_mov_b32 v{NC+i}, v12")
    a.label("k2_go")
    def rdK(i): e(f"ds_read_b128 v[{KF[i&1]}:{KF[i&1]+3}], v5 offset:{2048*i}")
    def rdV(i,g): e(f"ds_read_b128 v[{VF[i&1]+4*g}:{VF[i&1]+4*g+3}], v4 offset:{2048*i+512*g}")
    def mS(i): e(f"v_mfma_f32_32x32x16_bf16 v[{S[i&1]}:{S[i&1]+15}], v[{KF[i&1]}:{KF[i&1]+3}], v[{Q}:{Q+3}], v[{NC}:{NC+15}]")
    def mO(i,g): e(f"v_mfma_f32_32x32x16_bf16 v[{O}:{O+15}], v[{VF[i&1]+4*g}:{VF[i&1]+4*g+3}], v[{P+4*g}:{P+4*g+3}], v[{O}:{O+15}]")
    rdK(0); rdK(1); e("s_mov_b64 exec, s[30:31]"); rdV(0,0); rdV(0,1); e("s_mov_b64 exec, -1")
    for i in range(4): e(f"v_mov_b32 v{P+4+i}, 0")
    e("s_waitcnt lgkmcnt(3)"); mS(0); e("s_mov_b32 s33, 8"); e("s_setprio 1"); e("s_nop 10")
    a.label("k2_loop")
    for i in range(8):
        s=S[i&1]
        ex=lambda j: e(f"v_exp_f32 v{s+j}, v{s+j}")
        cv=lambda j: e(f"v_cvt_pk_bf16_f32 v{P+j}, v{s+2*j}, v{s+2*j+1}")
        ex(0); ex(1)
        mO(i-1,1)
        ex(2); ex(3); cv(0)
        e("s_waitcnt lgkmcnt(0)")
        mS(i+1)
        rdK(i+2); e("s_mov_b64 exec, s[30:31]"); rdV(i+1,0); rdV(i+1,1); e("s_mov_b64 exec, -1")
        ex(4); ex(5); cv(1); ex(6); ex(7); cv(2); ex(8); ex(9); cv(3); ex(10); ex(11); cv(4)
        mO(i,0)
        ex(12); ex(13); cv(5); ex(14); ex(15); cv(6)
        if i==7:
            e("v_add_u32 v4, 16384, v4"); e("v_add_u32 v5, 16384, v5")
        else: e("s_nop 0")
        cv(7)
    e("s_bitcmp1_b32 s32, s33"); e("s_cbranch_scc0 k2_nb")
    stamp(a,3); e("s_barrier"); stamp(a,4)
    a.label("k2_nb")
    e("s_sub_u32 s33, s33, 1"); e("s_cmp_lg_u32 s33, 0"); e("s_cbranch_scc1 k2_loop")
    mO(7,1); e("s_nop 15")
    e(f"v_rcp_f32 v12, v{O+8}"); e("s_mul_i32 s27, s24, 118"); e("s_add_u32 s27, s27, s26"); e("s_lshl_b32 s27, s27, 10"); e(f"s_add_u32 s27, s27, {OH}")
    for i in range(8): e(f"v_mul_f32 v{O+i}, v{O+i}, v12")
    for i in range(4): e(f"v_cvt_pk_bf16_f32 v{P+i}, v{O+2*i}, v{O+2*i+1}")
    e(f"buffer_store_dwordx4 v[{P}:{P+3}], v7, s[44:47], s27 offen")
    e("s_waitcnt lgkmcnt(0)")
    stamp(a,5); stamp(a,7,True); stamp_out(a,8,0,0); stamp_out(a,8,7,16)
    e("s_endpgm")
    a.label("k2_ffn")
    G=16; U=32; X=48; R=64; PD=8; XD=3
    e("s_sub_u32 s26, s3, 8")
    e("s_lshl_b32 s28, s26, 13"); e("s_lshl_b32 s29, s24, 15"); e("s_add_u32 s29, s29, s28"); e("s_add_u32 s28, s28, 131072")
    e("v_lshlrev_b32 v2, 7, v0"); e("s_lshr_b32 s38, s24, 1"); e("s_cmp_eq_u32 s26, 3"); e("s_cbranch_scc1 k2_pf3")
    e("s_mul_i32 s39, s25, 720896"); e("s_mul_i32 s38, s38, 22528"); e("s_add_u32 s39, s39, s38"); e("s_lshl_b32 s38, s26, 13"); e("s_add_u32 s39, s39, s38"); e(f"s_add_u32 s39, s39, {WGU}")
    e("buffer_load_dword v133, v2, s[44:47], s39 offen"); e("s_branch k2_pfd")
    a.label("k2_pf3")
    e("s_lshl_b32 s39, s38, 12"); e(f"s_add_u32 s39, s39, {KV}"); e("buffer_load_dword v133, v2, s[44:47], s39 offen")
    a.label("k2_pfd")
    e("buffer_load_dword v134, v2, s[44:47], s29 offen")
    e("s_barrier")
    e("s_lshl_b32 s38, s26, 10"); e("s_add_u32 s38, s38, 24576"); e(f"s_add_u32 s39, s38, {KV}")
    def kvr(n):
        for j in range(n):
            e("s_mov_b32 m0, s38"); e("s_add_u32 s38, s38, 4096")
            e("buffer_load_dwordx4 v7, s[44:47], s39 offen lds"); e("s_add_u32 s39, s39, 4096")
    kvr(8)
    for j in range(2):
        e("s_mov_b32 m0, s28"); e("s_add_u32 s28, s28, 4096")
        for i in range(4): e(f"buffer_load_dwordx4 v7, s[44:47], s29 offen offset:{1024*i} lds")
        e("s_add_u32 s29, s29, 4096")
    e("s_mul_i32 s27, s25, 11"); e("s_add_u32 s27, s27, s26")
    e("s_lshl_b32 s34, s27, 16"); e(f"s_add_u32 s34, s34, {WGU}")
    def ld(s):
        b=R+8*(s%PD)
        e(f"buffer_load_dwordx4 v[{b}:{b+3}], v7, s[44:47], s34 offen offset:{2048*(s&1)}")
        e(f"buffer_load_dwordx4 v[{b+4}:{b+7}], v7, s[44:47], s34 offen offset:{2048*(s&1)+1024}")
        if s&1: e(f"s_add_u32 s34, s34, {4096 if s%32!=31 else 4096+3*65536}")
    for s in range(PD): ld(s)
    e("buffer_load_dword v2, v7, s[44:47], s34 offen"); e("buffer_load_dword v3, v7, s[44:47], s34 offen")
    e("v_add_u32 v5, 0x20000, v7")
    e(f"s_mov_b32 s36, {f2u(-2.302208198):#x}"); e(f"v_mov_b32 v6, {f2u(-2.302208198*0.044715):#x}")
    e(f"s_setprio {FPRIO}")
    stamp(a,3); e(f"s_waitcnt vmcnt({2*PD+2})"); e("s_barrier"); kvr(18); e("s_mov_b32 s32, 0")
    a.label("k2_item")
    def rx(s): e(f"ds_read_b128 v[{X+4*(s%4)}:{X+4*(s%4)+3}], v5 offset:{1024*s}")
    for s in range(XD): rx(s)
    for s in range(32):
        if s+XD<32: rx(s+XD)
        e(f"s_waitcnt vmcnt({2*PD-2+(2 if s<PD else 0)}) lgkmcnt({min(XD,31-s)})")
        b=R+8*(s%PD); x=X+4*(s%4)
        e(f"v_mfma_f32_32x32x16_bf16 v[{G}:{G+15}], v[{b}:{b+3}], v[{x}:{x+3}], "+("0" if s==0 else f"v[{G}:{G+15}]"))
        e(f"v_mfma_f32_32x32x16_bf16 v[{U}:{U+15}], v[{b+4}:{b+7}], v[{x}:{x+3}], "+("0" if s==0 else f"v[{U}:{U+15}]"))
        ld(s+PD)
    e("s_mul_i32 s35, s24, 118"); e("s_lshl_b32 s37, s27, 1"); e("s_add_u32 s35, s35, s37"); e("s_add_u32 s35, s35, 32"); e("s_lshl_b32 s35, s35, 10"); e(f"s_add_u32 s35, s35, {OH}")
    e("s_nop 8")
    T=128
    for j0 in range(0,16,4):
        js=range(j0,j0+4)
        for j in js: e(f"v_mul_f32 v{T+j%4}, v{G+j}, v{G+j}")
        for j in js: e(f"v_fma_f32 v{T+j%4}, v{T+j%4}, v6, s36")
        for j in js: e(f"v_mul_f32 v{T+j%4}, v{T+j%4}, v{G+j}")
        for j in js: e(f"v_exp_f32 v{T+j%4}, v{T+j%4}"); e(f"v_mul_f32 v{G+j}, v{G+j}, v{U+j}")
        for j in js: e(f"v_add_f32 v{T+j%4}, 1.0, v{T+j%4}")
        for j in js: e(f"v_rcp_f32 v{T+j%4}, v{T+j%4}")
        e("s_nop 0")
        for j in js: e(f"v_mul_f32 v{G+j}, v{G+j}, v{T+j%4}")
        for j in (j0,j0+2): e(f"v_cvt_pk_bf16_f32 v{8+j//2}, v{G+j}, v{G+j+1}")
    e("buffer_store_dwordx4 v[8:11], v7, s[44:47], s35 offen"); e("buffer_store_dwordx4 v[12:15], v7, s[44:47], s35 offen offset:1024")
    e("s_cmp_lg_u32 s32, 0"); e("s_cbranch_scc1 k2_fnb")
    stamp(a,4); e("s_barrier"); e("s_mov_b32 s32, 1")
    a.label("k2_fnb")
    e("s_add_u32 s26, s26, 4"); e("s_add_u32 s27, s27, 4")
    e("s_cmp_ge_u32 s26, 11"); e("s_cbranch_scc1 k2_fend")
    e("s_cmp_lt_u32 s27, 43"); e("s_cbranch_scc1 k2_item")
    a.label("k2_fend")
    e("s_waitcnt vmcnt(0)")
    stamp(a,5); stamp(a,7,True); stamp_out(a,8,8,8)
    a.label("k2_end")
    e("s_endpgm")
    return a.text(), 136
```

```python
import sys,importlib
sys.path.insert(0,'old')
from k1 import k1
from k2 import k2
from k3 import k3
N='parallel_sum__grouped_kv_mqa__glu_gated_geglu__prompt'
ref=open(f'cdna_kernels/{N}.s.ref').read()
hdr=ref[:ref.index('; Override launch')]
ks=[('prep_kernel',k1,1024,163840),('attn_kernel',k2,768,163840),('outp_kernel',k3,256,65536)]
s=hdr
for n,f,b,l in ks: s+=f"; @launch kernel={n} grid=(256,1,1) block=({b},1,1) lds={l}\n"
s+='.amdgcn_target "amdgcn-amd-amdhsa--gfx950"\n.text\n'
d='.section .rodata,"a"\n'
for n,f,b,l in ks:
    t,v=f()
    s+=f".globl {n}\n.p2align 8\n.type {n},@function\n{n}:\n"+t
    d+=f""".p2align 6
.amdhsa_kernel {n}
  .amdhsa_next_free_vgpr {v}
  .amdhsa_next_free_sgpr 102
  .amdhsa_accum_offset {v}
  .amdhsa_group_segment_fixed_size 0
  .amdhsa_kernarg_size 96
  .amdhsa_user_sgpr_count 2
  .amdhsa_user_sgpr_kernarg_segment_ptr 1
  .amdhsa_system_sgpr_workgroup_id_x 1
.end_amdhsa_kernel
"""
out=sys.argv[1] if len(sys.argv)>1 else f'cdna_kernels/{N}.s'
open(out,'w').write(s+d)
```

```python
import struct
XN=0; QF=0x200000; KV=0x400000; KMAX=0x420000; WGU=0x500000; W2=0x800000; OH=0xA00000; YP=0xC00000; WS_SIZE=0x1400000
def f2u(f): return struct.unpack('<I',struct.pack('<f',f))[0]
class Asm:
    def __init__(s,n): s.l=[]; s.n=n
    def e(s,t):
        import os
        if t.startswith('buffer_store') and s.n in os.environ.get('WT','').split(','): t+=os.environ.get('WTF',' sc0 sc1')
        s.l.append("    "+t)
    def label(s,t): s.l.append(t+":")
    def text(s): return "\n".join(s.l)+"\n"
def srd(a,d,b,n):
    a.e(f"s_mov_b32 s{d}, s{b}"); a.e(f"s_mov_b32 s{d+1}, s{b+1}"); a.e(f"s_mov_b32 s{d+2}, {n}"); a.e(f"s_mov_b32 s{d+3}, 0x00020000")
def allred(a,r,t,op,steps):
    for s in steps:
        a.e("s_nop 1")
        if s==1: a.e(f"{op}_dpp v{r}, v{r}, v{r} quad_perm:[1,0,3,2] row_mask:0xf bank_mask:0xf")
        elif s==2: a.e(f"{op}_dpp v{r}, v{r}, v{r} quad_perm:[2,3,0,1] row_mask:0xf bank_mask:0xf")
        elif s==4:
            a.e(f"v_mov_b32_dpp v{t}, v{r} row_ror:4 row_mask:0xf bank_mask:0xf"); a.e(f"{op} v{r}, v{r}, v{t}")
        elif s==8:
            a.e(f"v_mov_b32_dpp v{t}, v{r} row_ror:8 row_mask:0xf bank_mask:0xf"); a.e(f"{op} v{r}, v{r}, v{t}")
        else:
            a.e(f"v_mov_b32 v{t}, v{r}"); a.e("s_nop 1"); a.e(f"v_permlane{s}_swap_b32 v{r}, v{t}"); a.e("s_nop 1"); a.e(f"{op} v{r}, v{r}, v{t}")
def sumsq(a,src,d,t):
    for i in range(4):
        a.e(f"v_lshlrev_b32 v{t}, 16, v{src+i}")
        a.e(f"v_mul_f32 v{d}, v{t}, v{t}" if i==0 else f"v_fmac_f32 v{d}, v{t}, v{t}")
        a.e(f"v_and_b32 v{t}, 0xffff0000, v{src+i}"); a.e(f"v_fmac_f32 v{d}, v{t}, v{t}")
import os
STAMP=int(os.environ.get('STAMP','0'))
def stamp(a,i,real=False):
    if not STAMP: return
    a.e(("s_memrealtime" if real else "s_memtime")+" s[90:91]"); a.e("s_waitcnt lgkmcnt(0)"); a.e(f"s_mov_b32 s{70+i}, s90")
def stamp_out(a,n,wave,slot,wg=None):
    if not STAMP: return
    wg=STAMP-1
    L=f"st_{a.n}_{wave}_{slot}"
    a.e(f"s_cmp_lg_u32 s2, {wg}"); a.e(f"s_cbranch_scc1 {L}"); a.e(f"s_cmp_lg_u32 s3, {wave}"); a.e(f"s_cbranch_scc1 {L}")
    a.e("s_load_dwordx2 s[92:93], s[0:1], 80"); a.e("s_waitcnt lgkmcnt(0)"); a.e("s_mov_b32 s94, 256"); a.e("s_mov_b32 s95, 0x20000"); a.e("s_mov_b64 exec, 1")
    a.e("v_mov_b32 v0, 0")
    for i in range(n):
        a.e(f"v_mov_b32 v1, s{70+i}"); a.e(f"buffer_store_dword v1, v0, s[92:95], 0 offen offset:{4*(slot+i)}")
    a.e("s_waitcnt vmcnt(0)")
    a.label(L)
```

```python
from common import *
def k1():
    a=Asm('k1')
    e=a.e
    e("s_cmp_ge_u32 s2, 256"); e("s_cbranch_scc1 k1_end")
    e("s_load_dwordx8 s[4:11], s[0:1], 0")
    e("s_load_dwordx2 s[12:13], s[0:1], 32")
    e("s_load_dwordx4 s[16:19], s[0:1], 48")
    e("s_load_dwordx2 s[20:21], s[0:1], 64")
    e("s_load_dwordx2 s[22:23], s[0:1], 88")
    e("v_lshrrev_b32 v1, 6, v0"); e("v_and_b32 v0, 63, v0"); e("s_nop 0")
    e("v_readfirstlane_b32 s3, v1")
    e("s_and_b32 s24, s2, 7"); e("s_lshl_b32 s24, s24, 2"); e("s_bfe_u32 s25, s2, 0x20003"); e("s_add_u32 s24, s24, s25"); e("s_lshr_b32 s25, s2, 5")
    e("v_and_b32 v1, 3, v0"); e("v_and_b32 v2, 15, v0"); e("v_lshrrev_b32 v14, 4, v0")
    e("s_lshl_b32 s26, s24, 6"); e("s_lshl_b32 s27, s3, 2"); e("s_add_u32 s26, s26, s27"); e("s_lshl_b32 s26, s26, 10")
    e("v_lshlrev_b32 v3, 10, v14"); e("v_lshl_add_u32 v3, v2, 4, v3")
    e("s_waitcnt lgkmcnt(0)")
    srd(a,28,4,2097152); srd(a,32,6,524288); srd(a,36,8,16384); srd(a,40,10,16384); srd(a,44,22,WS_SIZE)
    stamp(a,0); stamp(a,6,True)
    for i in range(4): e(f"buffer_load_dwordx4 v[{16+4*i}:{19+4*i}], v3, s[28:31], s26 offen offset:{256*i}")
    e("v_lshrrev_b32 v4, 3, v0"); e("v_and_b32 v5, 7, v0"); e("v_and_b32 v6, 16, v0"); e("v_lshrrev_b32 v6, 2, v6")
    e("v_xor_b32 v5, v5, v6"); e("v_lshlrev_b32 v4, 10, v4"); e("v_lshl_add_u32 v4, v5, 4, v4")
    e("s_lshl_b32 s48, s3, 15"); e("s_lshl_b32 s49, s25, 7"); e("s_add_u32 s48, s48, s49")
    e("s_lshl_b32 s49, s3, 12"); e("s_add_u32 s49, s49, 67584")
    for i in range(4):
        e("s_mov_b32 m0, s49"); e("s_add_u32 s49, s49, 1024")
        e("buffer_load_dwordx4 v4, s[32:35], s48 offen lds"); e("s_add_u32 s48, s48, 8192")
    e("v_lshlrev_b32 v7, 4, v0")
    e("s_cmp_ge_u32 s25, 4"); e("s_cbranch_scc1 k1_nokv")
    e("s_lshl_b32 s48, s3, 10"); e("s_add_u32 s49, s48, 133120"); e("s_mov_b32 m0, s49")
    e("s_cmp_ge_u32 s25, 2"); e("s_cbranch_scc1 k1_ldv")
    e("buffer_load_dwordx4 v7, s[36:39], s48 offen lds"); e("s_branch k1_nokv")
    a.label("k1_ldv")
    e("buffer_load_dwordx4 v7, s[40:43], s48 offen lds")
    a.label("k1_nokv")
    e("s_mov_b32 s50, 0")
    e("s_cmp_lt_u32 s3, 8"); e("s_cbranch_scc1 k1_ln")
    e("s_sub_u32 s51, s3, 8"); e("s_lshl_b32 s51, s51, 8"); e("s_add_u32 s51, s51, s2")
    e("s_cmp_ge_u32 s51, 580"); e("s_cbranch_scc1 k1_ln")
    e("s_mov_b32 s50, 1")
    e("s_cmp_ge_u32 s51, 344"); e("s_cbranch_scc1 k1_w2")
    e("s_mov_b32 s52, 0"); srd(a,56,16,1409024)
    e("s_cmp_lt_u32 s51, 172"); e("s_cbranch_scc1 k1_gu")
    e("s_sub_u32 s51, s51, 172"); e("s_mov_b32 s52, 1024"); srd(a,56,18,1409024)
    a.label("k1_gu")
    e("s_lshl_b32 s51, s51, 6"); e("v_add_u32 v8, s51, v0")
    e("v_mul_u32_u24 v9, 24386, v8"); e("v_lshrrev_b32 v9, 22, v9")
    e("v_mul_u32_u24 v10, 172, v9"); e("v_sub_u32 v10, v8, v10")
    e("v_mul_u32_u24 v11, 22016, v9"); e("v_lshl_add_u32 v11, v10, 4, v11")
    e("v_lshrrev_b32 v12, 2, v10"); e("v_lshlrev_b32 v12, 16, v12")
    e("v_lshrrev_b32 v13, 1, v9"); e("v_lshl_add_u32 v12, v13, 11, v12")
    e("v_and_b32 v13, 1, v9"); e("v_lshl_add_u32 v12, v13, 9, v12")
    e("v_and_b32 v13, 3, v10"); e("v_lshl_add_u32 v12, v13, 7, v12")
    e(f"s_add_u32 s52, s52, {WGU}")
    for j in range(8): e(f"s_mov_b32 s{60+j}, {j*2752}")
    e("s_branch k1_rl")
    a.label("k1_w2")
    e("s_sub_u32 s51, s51, 344"); e("s_mov_b32 s53, 0"); srd(a,56,12,524288)
    e("s_cmp_lt_u32 s51, 64"); e("s_cbranch_scc1 k1_w2b")
    e("s_sub_u32 s51, s51, 64"); e("s_mov_b32 s53, 32"); srd(a,56,20,1409024)
    a.label("k1_w2b")
    e("s_lshr_b32 s54, s51, 1"); e("s_and_b32 s55, s51, 1")
    e("s_lshl_b32 s52, s54, 14"); e("s_lshl_b32 s51, s55, 12"); e("s_add_u32 s51, s51, s52")
    e("v_add_u32 v11, s51, v7")
    e("s_add_u32 s53, s53, s54"); e("s_lshl_b32 s53, s53, 10"); e("s_lshl_b32 s55, s55, 9"); e("s_add_u32 s52, s53, s55")
    e(f"s_add_u32 s52, s52, {W2}")
    e("v_lshrrev_b32 v12, 2, v0"); e(f"v_mul_u32_u24 v12, {118*1024}, v12")
    e("v_and_b32 v13, 3, v0"); e("v_lshl_add_u32 v12, v13, 7, v12")
    for j in range(8): e(f"s_mov_b32 s{60+j}, {(j&3)*1024+(j>>2)*8192}")
    a.label("k1_rl")
    for j in range(8): e(f"buffer_load_dwordx4 v[{64+4*j}:{67+4*j}], v11, s[56:59], s{60+j} offen")
    e("s_waitcnt vmcnt(12)"); e("s_branch k1_ln2")
    a.label("k1_ln")
    e("s_waitcnt vmcnt(4)")
    a.label("k1_ln2")
    stamp(a,1)
    for i in range(16):
        e(f"v_lshlrev_b32 v{32+2*i}, 16, v{16+i}"); e(f"v_and_b32 v{33+2*i}, 0xffff0000, v{16+i}")
    def tree(dst, regs, op):
        pass
    for i in range(2): e(f"v_pk_add_f32 v[{16+2*i}:{17+2*i}], v[{32+2*i}:{33+2*i}], v[{36+2*i}:{37+2*i}]")
    for j in range(2,8):
        for i in range(2): e(f"v_pk_add_f32 v[{16+2*i}:{17+2*i}], v[{16+2*i}:{17+2*i}], v[{32+4*j+2*i}:{33+4*j+2*i}]")
    e("v_add_f32 v16, v16, v17"); e("v_add_f32 v18, v18, v19"); e("v_add_f32 v16, v16, v18")
    allred(a,16,17,"v_add_f32",[1,2,4,8])
    e("v_mul_f32 v16, 0x3b000000, v16"); e("v_sub_f32 v18, 0, v16"); e("v_sub_f32 v19, 0, v16")
    for j in range(16):
        t=24+2*(j%4); c=20+2*(j%2)
        e(f"v_pk_add_f32 v[{t}:{t+1}], v[{32+2*j}:{33+2*j}], v[18:19]")
        e(f"v_pk_mul_f32 v[{c}:{c+1}], v[{t}:{t+1}], v[{t}:{t+1}]" if j<2 else f"v_pk_fma_f32 v[{c}:{c+1}], v[{t}:{t+1}], v[{t}:{t+1}], v[{c}:{c+1}]")
    e("v_add_f32 v20, v20, v21"); e("v_add_f32 v22, v22, v23"); e("v_add_f32 v20, v20, v22")
    allred(a,20,21,"v_add_f32",[1,2,4,8])
    e("v_mul_f32 v20, 0x3b000000, v20")
    def rb(r): e(f"v_cvt_pk_bf16_f32 v{r}, v{r}, v{r}"); e(f"v_and_b32 v{r}, 0xffff0000, v{r}")
    rb(16); rb(20); e("v_add_f32 v20, 0x3727c5ac, v20"); rb(20); e("v_sqrt_f32 v20, v20"); e("s_nop 0"); rb(20)
    e("v_rcp_f32 v20, v20"); e("s_nop 0"); e("v_mul_f32 v22, v16, v20"); e("v_sub_f32 v22, 0, v22"); e("v_mov_b32 v21, v20"); e("v_mov_b32 v23, v22")
    for j in range(16): e(f"v_pk_fma_f32 v[{32+2*j}:{33+2*j}], v[{32+2*j}:{33+2*j}], v[20:21], v[22:23]")
    for i in range(16): e(f"v_cvt_pk_bf16_f32 v{16+i}, v{32+2*i}, v{33+2*i}")
    e("s_lshr_b32 s48, s3, 3"); e("s_mul_i32 s48, s48, 33792"); e("s_and_b32 s49, s3, 7"); e("s_lshl_b32 s49, s49, 6"); e("s_add_u32 s48, s48, s49")
    e("v_mul_u32_u24 v4, 528, v2"); e("v_lshl_add_u32 v4, v14, 4, v4"); e("v_add_u32 v4, s48, v4")
    for i in range(4): e(f"ds_write_b128 v4, v[{16+4*i}:{19+4*i}] offset:{8448*i}")
    e("v_lshrrev_b32 v15, 5, v0"); e("v_lshl_add_u32 v15, v15, 4, v7")
    stamp(a,2); e("s_cmp_lg_u32 s50, 0"); e("s_cbranch_scc1 k1_bw"); e("s_waitcnt vmcnt(0)"); a.label("k1_bw"); e("s_waitcnt vmcnt(8) lgkmcnt(0)"); stamp(a,3); e("s_barrier"); stamp(a,4)
    e("s_cmp_ge_u32 s3, 8"); e("s_cbranch_scc1 k1_rfin")
    e("s_cmp_ge_u32 s3, 4"); e("s_cbranch_scc1 k1_aux")
    def trlane():
        e("v_bfe_u32 v8, v0, 2, 2"); e("v_bfe_u32 v9, v0, 4, 1"); e("v_lshrrev_b32 v10, 5, v0"); e("v_lshl_add_u32 v10, v10, 3, v8")
    trlane()
    e("s_and_b32 s48, s3, 1"); e("s_lshr_b32 s49, s3, 1")
    e("s_lshl_b32 s51, s48, 6"); e("v_lshlrev_b32 v11, 3, v1"); e("v_lshl_add_u32 v11, v9, 5, v11"); e("v_add_u32 v11, s51, v11")
    e("v_and_b32 v12, 8, v0"); e("v_lshlrev_b32 v12, 3, v12"); e("v_xor_b32 v11, v11, v12")
    e("v_lshl_add_u32 v11, v10, 7, v11"); e("v_add_u32 v11, 67584, v11")
    e("s_mul_i32 s51, s49, 33792"); e("v_add_u32 v12, s51, v15")
    def chain(stepA, qoff, swap):
        for i in range(16): e(f"v_mov_b32 v{32+i}, 0")
        D=4
        def rd(s):
            b=64+8*(s%D)
            e(f"ds_read_b64_tr_b16 v[{b}:{b+1}], v11 offset:{s*stepA}"); e(f"ds_read_b64_tr_b16 v[{b+2}:{b+3}], v11 offset:{s*stepA+qoff}")
            e(f"ds_read_b128 v[{b+4}:{b+7}], v12 offset:{s*1056}")
        for s in range(D-1): rd(s)
        for s in range(32):
            if s+D-1<32: rd(s+D-1)
            e(f"s_waitcnt lgkmcnt({3*min(D-1,31-s)})")
            b=64+8*(s%D); A=f"v[{b}:{b+3}]"; B=f"v[{b+4}:{b+7}]"
            if swap: A,B=B,A
            e(f"v_mfma_f32_32x32x16_bf16 v[32:47], {A}, {B}, v[32:47]")
        e("s_nop 15")
    chain(2048,512,False)
    e(f"s_mov_b32 s51, {f2u(0.25*1.4426950408889634):#x}")
    for i in range(16): e(f"v_mul_f32 v{32+i}, s51, v{32+i}")
    for i in range(8): e(f"v_cvt_pk_bf16_f32 v{48+i}, v{32+2*i}, v{33+2*i}")
    e("s_lshl_b32 s51, s24, 1"); e("s_add_u32 s51, s51, s49"); e("s_lshl_b32 s51, s51, 5"); e("s_lshl_b32 s52, s25, 2"); e("s_add_u32 s51, s51, s52")
    e("s_lshl_b32 s52, s48, 1"); e("s_add_u32 s51, s51, s52"); e("s_lshl_b32 s51, s51, 10"); e(f"s_add_u32 s51, s51, {QF}")
    e("buffer_store_dwordx4 v[48:51], v7, s[44:47], s51 offen"); e("buffer_store_dwordx4 v[52:55], v7, s[44:47], s51 offen offset:1024")
    stamp(a,5); e("s_waitcnt vmcnt(0)"); stamp(a,7,True); stamp_out(a,8,0,0)
    e("s_endpgm")
    a.label("k1_aux")
    e("s_cmp_ge_u32 s25, 4"); e("s_cbranch_scc1 k1_xn")
    e("s_cmp_lg_u32 s3, 4"); e("s_cbranch_scc1 k1_end")
    trlane()
    e("v_lshlrev_b32 v11, 3, v1"); e("v_lshl_add_u32 v11, v10, 5, v11"); e("v_add_u32 v11, 133120, v11")
    e("s_and_b32 s49, s25, 1"); e("s_mul_i32 s51, s49, 33792"); e("v_add_u32 v12, s51, v15")
    e("s_lshl_b32 s51, s24, 1"); e("s_add_u32 s49, s51, s49")
    e("s_lshl_b32 s51, s49, 11"); e(f"s_add_u32 s51, s51, {KV}")
    e("s_cmp_ge_u32 s25, 2"); e("s_cbranch_scc1 k1_v")
    chain(512,128,False)
    for i in range(4): e(f"v_cvt_pk_bf16_f32 v{48+i}, v{32+2*i}, v{33+2*i}")
    e("buffer_store_dwordx4 v[48:51], v7, s[44:47], s51 offen")
    sumsq(a,48,52,53)
    allred(a,52,53,"v_add_f32",[32]); allred(a,52,53,"v_max_f32",[1,2,4,8,16])
    e("s_lshl_b32 s49, s49, 2"); e(f"s_add_u32 s49, s49, {KMAX}"); e("v_mov_b32 v54, 0")
    e("s_mov_b64 exec, 1"); e("buffer_store_dword v52, v54, s[44:47], s49 offen")
    e("s_endpgm")
    a.label("k1_v")
    chain(512,128,True)
    for i in range(8): e(f"v_cvt_pk_bf16_f32 v{48+i}, v{32+2*i}, v{33+2*i}")
    e("v_and_b32 v8, 15, v0"); e("v_lshrrev_b32 v9, 5, v0"); e("v_lshl_add_u32 v8, v9, 4, v8"); e("v_lshlrev_b32 v8, 4, v8")
    e("s_mov_b32 exec_lo, 0xffff0000"); e("s_mov_b32 exec_hi, 0xffff0000")
    e("buffer_store_dwordx4 v[48:51], v8, s[44:47], s51 offen offset:1024"); e("buffer_store_dwordx4 v[52:55], v8, s[44:47], s51 offen offset:1536")
    e("s_endpgm")
    a.label("k1_xn")
    e("s_sub_u32 s48, s25, 4"); e("s_lshl_b32 s48, s48, 2"); e("s_add_u32 s48, s48, s3"); e("s_sub_u32 s48, s48, 4"); e("s_mul_i32 s49, s48, 4224"); e("s_lshl_b32 s48, s48, 12")
    e("v_add_u32 v8, s49, v15")
    for i in range(4): e(f"ds_read_b128 v[{16+4*i}:{19+4*i}], v8 offset:{1056*i}")
    e("s_lshl_b32 s49, s24, 16"); e("s_add_u32 s48, s48, s49")
    for i in range(4):
        e(f"s_waitcnt lgkmcnt({3-i})"); e(f"buffer_store_dwordx4 v[{16+4*i}:{19+4*i}], v7, s[44:47], s48 offen offset:{1024*i}")
    e("s_endpgm")
    a.label("k1_rfin")
    e("s_cmp_eq_u32 s50, 0"); e("s_cbranch_scc1 k1_end")
    e("s_mov_b32 s48, 0x05040100"); e("s_mov_b32 s49, 0x07060302"); e("s_waitcnt vmcnt(0)")
    e("s_sub_u32 s53, s3, 8"); e("s_lshl_b32 s53, s53, 12"); e("s_add_u32 s53, s53, 149504")
    e("v_and_b32 v8, 7, v0"); e("v_lshrrev_b32 v9, 3, v0"); e("v_xor_b32 v10, v8, v9"); e("v_lshlrev_b32 v10, 4, v10")
    e("v_lshlrev_b32 v9, 2, v9")
    for k in range(8): e(f"ds_bpermute_b32 v{48+k}, v9, v12 offset:{32*k}")
    e("v_and_b32 v11, 31, v0"); e("v_lshlrev_b32 v11, 7, v11"); e("v_lshl_add_u32 v11, v8, 4, v11"); e("v_add_u32 v11, s53, v11")
    e("v_add_u32 v13, s53, v7")
    for c in range(8):
        for p in range(4): e(f"v_perm_b32 v{16+4*c+p}, v{64+4*(2*p+1)+(c>>1)}, v{64+4*(2*p)+(c>>1)}, s{48+(c&1)}")
        e(f"v_xor_b32 v{56+c}, {16*c}, v11")
    e("s_waitcnt lgkmcnt(0)")
    for k in range(8): e(f"v_add_u32 v{48+k}, v{48+k}, v10")
    for r in range(2):
        e(f"s_mov_b32 exec_lo, {-1 if r==0 else 0}"); e(f"s_mov_b32 exec_hi, {0 if r==0 else -1}")
        for c in range(8): e(f"ds_write_b128 v{56+c}, v[{16+4*c}:{19+4*c}]")
        e("s_mov_b64 exec, -1"); e("s_waitcnt lgkmcnt(0)")
        for k in range(4): e(f"ds_read_b128 v[{64+16*r+4*k}:{67+16*r+4*k}], v13 offset:{1024*k}")
        for k in range(4):
            e(f"s_waitcnt lgkmcnt({3-k})"); e(f"buffer_store_dwordx4 v[{64+16*r+4*k}:{67+16*r+4*k}], v{48+4*r+k}, s[44:47], s52 offen")
    stamp(a,5); e("s_waitcnt vmcnt(0)"); stamp(a,7,True); stamp_out(a,8,8,8)
    a.label("k1_end")
    e("s_endpgm")
    return a.text(), 96
```

```python
from common import *
def k3():
    a=Asm('k3'); e=a.e
    e("s_cmp_ge_u32 s2, 256"); e("s_cbranch_scc1 k3_end")
    e("s_load_dwordx2 s[4:5], s[0:1], 0"); e("s_load_dwordx2 s[6:7], s[0:1], 72"); e("s_load_dwordx2 s[22:23], s[0:1], 88")
    e("v_lshrrev_b32 v1, 6, v0"); e("v_and_b32 v0, 63, v0"); e("s_nop 0")
    e("v_readfirstlane_b32 s3, v1")
    e("s_and_b32 s24, s2, 7"); e("s_lshl_b32 s24, s24, 2"); e("s_bfe_u32 s25, s2, 0x20003"); e("s_add_u32 s24, s24, s25")
    e("s_lshr_b32 s25, s2, 5")
    e("v_lshlrev_b32 v7, 4, v0"); e(f"v_add_u32 v6, {118*1024}, v7")
    e(f"s_mul_i32 s26, s25, {236*1024}"); e("s_lshl_b32 s28, s3, 10"); e("s_add_u32 s26, s26, s28"); e(f"s_add_u32 s26, s26, {W2}")
    e(f"s_mul_i32 s27, s24, {236*1024}"); e("s_add_u32 s27, s27, s28"); e(f"s_add_u32 s27, s27, {OH}")
    e("s_waitcnt lgkmcnt(0)")
    srd(a,44,22,WS_SIZE); srd(a,28,4,2097152); srd(a,32,6,2097152)
    ACC=16; R=80; PD=7; XR=8
    def ld(i):
        b=R+16*(i%PD)
        e(f"buffer_load_dwordx4 v[{b}:{b+3}], v7, s[44:47], s26 offen"); e(f"buffer_load_dwordx4 v[{b+8}:{b+11}], v7, s[44:47], s27 offen")
        e(f"buffer_load_dwordx4 v[{b+4}:{b+7}], v6, s[44:47], s26 offen"); e(f"buffer_load_dwordx4 v[{b+12}:{b+15}], v6, s[44:47], s27 offen")
        e("s_add_u32 s26, s26, 4096"); e("s_add_u32 s27, s27, 4096")
    e("s_lshl_b32 s36, s24, 1"); e("s_lshr_b32 s37, s3, 1"); e("s_add_u32 s36, s36, s37"); e("s_lshl_b32 s36, s36, 15")
    e("s_lshl_b32 s37, s25, 1"); e("s_and_b32 s38, s3, 1"); e("s_add_u32 s37, s37, s38"); e("s_lshl_b32 s37, s37, 6"); e("s_add_u32 s36, s36, s37")
    e("v_and_b32 v2, 31, v0"); e("v_lshrrev_b32 v3, 5, v0"); e("v_lshlrev_b32 v2, 10, v2"); e("v_lshl_add_u32 v2, v3, 3, v2")
    stamp(a,0); stamp(a,6,True)
    for i in range(PD): ld(i)
    def mm(i):
        b=R+16*(i%PD)
        for t in range(4):
            A=b+4*(t&1); B=b+8+4*(t>>1); c=ACC+16*t
            e(f"v_mfma_f32_32x32x16_bf16 v[{c}:{c+15}], v[{A}:{A+3}], v[{B}:{B+3}], "+("0" if i==0 else f"v[{c}:{c+15}]"))
    for i in range(29):
        rem=min(PD-1,29-i)
        e(f"s_waitcnt vmcnt({4*rem+(4 if i+PD>30 else 0)})")
        if i==0: stamp(a,1)
        mm(i)
        if i+PD<30: ld(i+PD)
        if i+PD==30:
            for q in range(4): e(f"buffer_load_dwordx2 v[{XR+2*q}:{XR+2*q+1}], v2, s[28:31], s36 offen offset:{16*q}")
    e("s_waitcnt vmcnt(4)"); e("s_cmp_ge_u32 s3, 2"); e("s_cbranch_scc1 k3_red")
    mm(29)
    a.label("k3_red")
    stamp(a,2)
    e("s_lshl_b32 s39, s3, 12"); e("v_add_u32 v4, s39, v7"); e("s_nop 15")
    for t in range(4):
        e(f"s_cmp_eq_u32 s3, {t}"); e(f"s_cbranch_scc1 k3_sk{t}")
        for q in range(4): e(f"ds_write_b128 v4, v[{ACC+16*t+4*q}:{ACC+16*t+4*q+3}] offset:{16384*t+1024*q}")
        e(f"s_branch k3_n{t}")
        a.label(f"k3_sk{t}")
        for q in range(16): e(f"v_mov_b32 v{R+64+q}, v{ACC+16*t+q}")
        a.label(f"k3_n{t}")
    e("s_waitcnt lgkmcnt(0)"); stamp(a,3); e("s_barrier"); stamp(a,4)
    e("s_lshl_b32 s39, s3, 14")
    for k in range(1,4):
        e(f"s_add_u32 s40, s3, {k}"); e("s_and_b32 s40, s40, 3"); e("s_lshl_b32 s40, s40, 12"); e("s_add_u32 s40, s40, s39"); e("v_add_u32 v5, s40, v7")
        for q in range(4): e(f"ds_read_b128 v[{R+16*(k-1)+4*q}:{R+16*(k-1)+4*q+3}], v5 offset:{1024*q}")
    F=R+64
    e("s_waitcnt vmcnt(0)")
    for q in range(8):
        e(f"v_lshlrev_b32 v1, 16, v{XR+q}"); e(f"v_add_f32 v{F+2*q}, v{F+2*q}, v1"); e(f"v_and_b32 v1, 0xffff0000, v{XR+q}"); e(f"v_add_f32 v{F+2*q+1}, v{F+2*q+1}, v1")
    for k in range(3):
        e(f"s_waitcnt lgkmcnt({8-4*k})")
        for q in range(16): e(f"v_add_f32 v{F+q}, v{F+q}, v{R+16*k+q}")
    for q in range(8): e(f"v_cvt_pk_bf16_f32 v{XR+q}, v{F+2*q}, v{F+2*q+1}")
    e("s_lshr_b32 s41, s3, 1"); e("s_mul_i32 s41, s41, 20480"); e("s_lshl_b32 s42, s38, 6")
    e("v_and_b32 v16, 31, v0"); e("v_and_b32 v17, 7, v0"); e("v_lshlrev_b32 v18, 4, v17"); e("v_xor_b32 v18, s42, v18")
    e("v_lshl_add_u32 v18, v16, 7, v18"); e("v_lshl_add_u32 v18, v3, 3, v18"); e("v_add_u32 v18, s41, v18")
    for q in range(4):
        e(f"v_xor_b32 v{20+q}, {16*q}, v18"); e(f"ds_write_b64 v{20+q}, v[{XR+2*q}:{XR+2*q+1}]")
    e("v_lshrrev_b32 v16, 3, v0"); e("v_xor_b32 v19, v17, v16"); e("v_lshlrev_b32 v19, 4, v19"); e("v_lshl_add_u32 v19, v16, 7, v19")
    e("s_lshl_b32 s42, s38, 11"); e("s_add_u32 s41, s41, s42"); e("v_add_u32 v19, s41, v19")
    e("v_lshlrev_b32 v16, 10, v16"); e("v_lshl_add_u32 v16, v17, 4, v16")
    e("s_lshl_b32 s41, s24, 2"); e("s_add_u32 s41, s41, s3"); e("s_lshl_b32 s41, s41, 14"); e("s_lshl_b32 s42, s25, 7"); e("s_add_u32 s41, s41, s42"); e("s_add_u32 s42, s41, 8192")
    e("s_waitcnt lgkmcnt(0)"); e("s_barrier")
    e("ds_read_b128 v[24:27], v19"); e("ds_read_b128 v[28:31], v19 offset:1024")
    e("s_waitcnt lgkmcnt(1)"); e("buffer_store_dwordx4 v[24:27], v16, s[32:35], s41 offen")
    e("s_waitcnt lgkmcnt(0)"); e("buffer_store_dwordx4 v[28:31], v16, s[32:35], s42 offen")
    stamp(a,5); e("s_waitcnt vmcnt(0)"); stamp(a,7,True); stamp_out(a,8,0,0)
    a.label("k3_end")
    e("s_endpgm")
    return a.text(), 192
```

```python
from common import *
def k1():
    a=Asm('k1')
    e=a.e
    e("s_cmp_ge_u32 s2, 256"); e("s_cbranch_scc1 k1_end")
    e("s_load_dwordx8 s[4:11], s[0:1], 0")
    e("s_load_dwordx2 s[12:13], s[0:1], 32")
    e("s_load_dwordx4 s[16:19], s[0:1], 48")
    e("s_load_dwordx2 s[20:21], s[0:1], 64")
    e("s_load_dwordx2 s[22:23], s[0:1], 88")
    e("v_lshrrev_b32 v1, 6, v0"); e("v_and_b32 v0, 63, v0"); e("s_nop 0")
    e("v_readfirstlane_b32 s3, v1")
    e("s_and_b32 s24, s2, 7"); e("s_lshl_b32 s24, s24, 2"); e("s_bfe_u32 s25, s2, 0x20003"); e("s_add_u32 s24, s24, s25"); e("s_lshr_b32 s25, s2, 5")
    e("v_and_b32 v1, 3, v0"); e("v_and_b32 v2, 15, v0"); e("v_lshrrev_b32 v14, 4, v0")
    e("s_lshl_b32 s26, s24, 6"); e("s_lshl_b32 s27, s3, 2"); e("s_add_u32 s26, s26, s27"); e("s_lshl_b32 s26, s26, 10")
    e("v_lshlrev_b32 v3, 10, v14"); e("v_lshl_add_u32 v3, v2, 4, v3")
    e("s_waitcnt lgkmcnt(0)")
    srd(a,28,4,2097152); srd(a,32,6,524288); srd(a,36,8,16384); srd(a,40,10,16384); srd(a,44,22,WS_SIZE)
    stamp(a,0); stamp(a,6,True)
    for i in range(4): e(f"buffer_load_dwordx4 v[{16+4*i}:{19+4*i}], v3, s[28:31], s26 offen offset:{256*i}")
    e("v_lshrrev_b32 v4, 3, v0"); e("v_and_b32 v5, 7, v0"); e("v_and_b32 v6, 16, v0"); e("v_lshrrev_b32 v6, 2, v6")
    e("v_xor_b32 v5, v5, v6"); e("v_lshlrev_b32 v4, 10, v4"); e("v_lshl_add_u32 v4, v5, 4, v4")
    e("s_lshl_b32 s48, s3, 15"); e("s_lshl_b32 s49, s25, 7"); e("s_add_u32 s48, s48, s49")
    e("s_lshl_b32 s49, s3, 12"); e("s_add_u32 s49, s49, 67584"); e("s_waitcnt vmcnt(0)")
    for i in range(4):
        e("s_mov_b32 m0, s49"); e("s_add_u32 s49, s49, 1024")
        e("buffer_load_dwordx4 v4, s[32:35], s48 offen lds"); e("s_add_u32 s48, s48, 8192")
    e("v_lshlrev_b32 v7, 4, v0")
    e("s_cmp_ge_u32 s25, 4"); e("s_cbranch_scc1 k1_nokv")
    e("s_lshl_b32 s48, s3, 10"); e("s_add_u32 s49, s48, 133120"); e("s_mov_b32 m0, s49")
    e("s_cmp_ge_u32 s25, 2"); e("s_cbranch_scc1 k1_ldv")
    e("buffer_load_dwordx4 v7, s[36:39], s48 offen lds"); e("s_branch k1_nokv")
    a.label("k1_ldv")
    e("buffer_load_dwordx4 v7, s[40:43], s48 offen lds")
    a.label("k1_nokv")
    e("s_mov_b32 s50, 0")
    e("s_cmp_lt_u32 s3, 8"); e("s_cbranch_scc1 k1_ln")
    e("s_sub_u32 s51, s3, 8"); e("s_lshl_b32 s51, s51, 8"); e("s_add_u32 s51, s51, s2")
    e("s_cmp_ge_u32 s51, 580"); e("s_cbranch_scc1 k1_ln")
    e("s_mov_b32 s50, 1")
    e("s_cmp_ge_u32 s51, 344"); e("s_cbranch_scc1 k1_w2")
    e("s_mov_b32 s52, 0"); srd(a,56,16,1409024)
    e("s_cmp_lt_u32 s51, 172"); e("s_cbranch_scc1 k1_gu")
    e("s_sub_u32 s51, s51, 172"); e("s_mov_b32 s52, 1024"); srd(a,56,18,1409024)
    a.label("k1_gu")
    e("s_lshl_b32 s51, s51, 6"); e("v_add_u32 v8, s51, v0")
    e("v_mul_u32_u24 v9, 24386, v8"); e("v_lshrrev_b32 v9, 22, v9")
    e("v_mul_u32_u24 v10, 172, v9"); e("v_sub_u32 v10, v8, v10")
    e("v_mul_u32_u24 v11, 22016, v9"); e("v_lshl_add_u32 v11, v10, 4, v11")
    e("v_lshrrev_b32 v12, 2, v10"); e("v_lshlrev_b32 v12, 16, v12")
    e("v_lshrrev_b32 v13, 1, v9"); e("v_lshl_add_u32 v12, v13, 11, v12")
    e("v_and_b32 v13, 1, v9"); e("v_lshl_add_u32 v12, v13, 9, v12")
    e("v_and_b32 v13, 3, v10"); e("v_lshl_add_u32 v12, v13, 7, v12")
    e(f"s_add_u32 s52, s52, {WGU}")
    for j in range(8): e(f"s_mov_b32 s{60+j}, {j*2752}")
    e("s_branch k1_rl")
    a.label("k1_w2")
    e("s_sub_u32 s51, s51, 344"); e("s_mov_b32 s53, 0"); srd(a,56,12,524288)
    e("s_cmp_lt_u32 s51, 64"); e("s_cbranch_scc1 k1_w2b")
    e("s_sub_u32 s51, s51, 64"); e("s_mov_b32 s53, 32"); srd(a,56,20,1409024)
    a.label("k1_w2b")
    e("s_lshr_b32 s54, s51, 1"); e("s_and_b32 s55, s51, 1")
    e("s_lshl_b32 s52, s54, 14"); e("s_lshl_b32 s51, s55, 12"); e("s_add_u32 s51, s51, s52")
    e("v_add_u32 v11, s51, v7")
    e("s_add_u32 s53, s53, s54"); e("s_lshl_b32 s53, s53, 10"); e("s_lshl_b32 s55, s55, 9"); e("s_add_u32 s52, s53, s55")
    e(f"s_add_u32 s52, s52, {W2}")
    e("v_lshrrev_b32 v12, 2, v0"); e(f"v_mul_u32_u24 v12, {118*1024}, v12")
    e("v_and_b32 v13, 3, v0"); e("v_lshl_add_u32 v12, v13, 7, v12")
    for j in range(8): e(f"s_mov_b32 s{60+j}, {(j&3)*1024+(j>>2)*8192}")
    a.label("k1_rl")
    for j in range(8): e(f"buffer_load_dwordx4 v[{64+4*j}:{67+4*j}], v11, s[56:59], s{60+j} offen")
    e("s_branch k1_ln2")
    a.label("k1_ln")
    a.label("k1_ln2")
    stamp(a,1)
    for i in range(16):
        e(f"v_lshlrev_b32 v{32+2*i}, 16, v{16+i}"); e(f"v_and_b32 v{33+2*i}, 0xffff0000, v{16+i}")
    def tree(dst, regs, op):
        pass
    for i in range(2): e(f"v_pk_add_f32 v[{16+2*i}:{17+2*i}], v[{32+2*i}:{33+2*i}], v[{36+2*i}:{37+2*i}]")
    for j in range(2,8):
        for i in range(2): e(f"v_pk_add_f32 v[{16+2*i}:{17+2*i}], v[{16+2*i}:{17+2*i}], v[{32+4*j+2*i}:{33+4*j+2*i}]")
    e("v_add_f32 v16, v16, v17"); e("v_add_f32 v18, v18, v19"); e("v_add_f32 v16, v16, v18")
    allred(a,16,17,"v_add_f32",[1,2,4,8])
    e("v_mul_f32 v16, 0x3b000000, v16"); e("v_sub_f32 v18, 0, v16"); e("v_sub_f32 v19, 0, v16")
    for j in range(16):
        t=24+2*(j%4); c=20+2*(j%2)
        e(f"v_pk_add_f32 v[{t}:{t+1}], v[{32+2*j}:{33+2*j}], v[18:19]")
        e(f"v_pk_mul_f32 v[{c}:{c+1}], v[{t}:{t+1}], v[{t}:{t+1}]" if j<2 else f"v_pk_fma_f32 v[{c}:{c+1}], v[{t}:{t+1}], v[{t}:{t+1}], v[{c}:{c+1}]")
    e("v_add_f32 v20, v20, v21"); e("v_add_f32 v22, v22, v23"); e("v_add_f32 v20, v20, v22")
    allred(a,20,21,"v_add_f32",[1,2,4,8])
    e("v_mul_f32 v20, 0x3b000000, v20")
    def rb(r): e(f"v_cvt_pk_bf16_f32 v{r}, v{r}, v{r}"); e(f"v_and_b32 v{r}, 0xffff0000, v{r}")
    rb(16); rb(20); e("v_add_f32 v20, 0x3727c5ac, v20"); rb(20); e("v_sqrt_f32 v20, v20"); e("s_nop 0"); rb(20)
    e("v_rcp_f32 v20, v20"); e("s_nop 0"); e("v_mul_f32 v22, v16, v20"); e("v_sub_f32 v22, 0, v22"); e("v_mov_b32 v21, v20"); e("v_mov_b32 v23, v22")
    for j in range(16): e(f"v_pk_fma_f32 v[{32+2*j}:{33+2*j}], v[{32+2*j}:{33+2*j}], v[20:21], v[22:23]")
    for i in range(16): e(f"v_cvt_pk_bf16_f32 v{16+i}, v{32+2*i}, v{33+2*i}")
    e("s_lshr_b32 s48, s3, 3"); e("s_mul_i32 s48, s48, 33792"); e("s_and_b32 s49, s3, 7"); e("s_lshl_b32 s49, s49, 6"); e("s_add_u32 s48, s48, s49")
    e("v_mul_u32_u24 v4, 528, v2"); e("v_lshl_add_u32 v4, v14, 4, v4"); e("v_add_u32 v4, s48, v4")
    for i in range(4): e(f"ds_write_b128 v4, v[{16+4*i}:{19+4*i}] offset:{8448*i}")
    e("v_lshrrev_b32 v15, 5, v0"); e("v_lshl_add_u32 v15, v15, 4, v7")
    stamp(a,2); e("s_cmp_lg_u32 s50, 0"); e("s_cbranch_scc1 k1_bw"); e("s_waitcnt vmcnt(0)"); a.label("k1_bw"); e("s_waitcnt vmcnt(8) lgkmcnt(0)"); stamp(a,3); e("s_barrier"); stamp(a,4)
    e("s_cmp_ge_u32 s3, 8"); e("s_cbranch_scc1 k1_rfin")
    e("s_cmp_ge_u32 s3, 4"); e("s_cbranch_scc1 k1_aux")
    def trlane():
        e("v_bfe_u32 v8, v0, 2, 2"); e("v_bfe_u32 v9, v0, 4, 1"); e("v_lshrrev_b32 v10, 5, v0"); e("v_lshl_add_u32 v10, v10, 3, v8")
    trlane()
    e("s_and_b32 s48, s3, 1"); e("s_lshr_b32 s49, s3, 1")
    e("s_lshl_b32 s51, s48, 6"); e("v_lshlrev_b32 v11, 3, v1"); e("v_lshl_add_u32 v11, v9, 5, v11"); e("v_add_u32 v11, s51, v11")
    e("v_and_b32 v12, 8, v0"); e("v_lshlrev_b32 v12, 3, v12"); e("v_xor_b32 v11, v11, v12")
    e("v_lshl_add_u32 v11, v10, 7, v11"); e("v_add_u32 v11, 67584, v11")
    e("s_mul_i32 s51, s49, 33792"); e("v_add_u32 v12, s51, v15")
    def chain(stepA, qoff, swap):
        for i in range(16): e(f"v_mov_b32 v{32+i}, 0")
        D=4
        def rd(s):
            b=64+8*(s%D)
            e(f"ds_read_b64_tr_b16 v[{b}:{b+1}], v11 offset:{s*stepA}"); e(f"ds_read_b64_tr_b16 v[{b+2}:{b+3}], v11 offset:{s*stepA+qoff}")
            e(f"ds_read_b128 v[{b+4}:{b+7}], v12 offset:{s*1056}")
        for s in range(D-1): rd(s)
        for s in range(32):
            if s+D-1<32: rd(s+D-1)
            e(f"s_waitcnt lgkmcnt({3*min(D-1,31-s)})")
            b=64+8*(s%D); A=f"v[{b}:{b+3}]"; B=f"v[{b+4}:{b+7}]"
            if swap: A,B=B,A
            e(f"v_mfma_f32_32x32x16_bf16 v[32:47], {A}, {B}, v[32:47]")
        e("s_nop 15")
    chain(2048,512,False)
    e(f"s_mov_b32 s51, {f2u(0.25*1.4426950408889634):#x}")
    for i in range(16): e(f"v_mul_f32 v{32+i}, s51, v{32+i}")
    for i in range(8): e(f"v_cvt_pk_bf16_f32 v{48+i}, v{32+2*i}, v{33+2*i}")
    e("s_lshl_b32 s51, s24, 1"); e("s_add_u32 s51, s51, s49"); e("s_lshl_b32 s51, s51, 5"); e("s_lshl_b32 s52, s25, 2"); e("s_add_u32 s51, s51, s52")
    e("s_lshl_b32 s52, s48, 1"); e("s_add_u32 s51, s51, s52"); e("s_lshl_b32 s51, s51, 10"); e(f"s_add_u32 s51, s51, {QF}")
    e("buffer_store_dwordx4 v[48:51], v7, s[44:47], s51 offen"); e("buffer_store_dwordx4 v[52:55], v7, s[44:47], s51 offen offset:1024")
    stamp(a,5); e("s_waitcnt vmcnt(0)"); stamp(a,7,True); stamp_out(a,8,0,0)
    e("s_endpgm")
    a.label("k1_aux")
    e("s_cmp_ge_u32 s25, 4"); e("s_cbranch_scc1 k1_xn")
    e("s_cmp_lg_u32 s3, 4"); e("s_cbranch_scc1 k1_end")
    trlane()
    e("v_lshlrev_b32 v11, 3, v1"); e("v_lshl_add_u32 v11, v10, 5, v11"); e("v_add_u32 v11, 133120, v11")
    e("s_and_b32 s49, s25, 1"); e("s_mul_i32 s51, s49, 33792"); e("v_add_u32 v12, s51, v15")
    e("s_lshl_b32 s51, s24, 1"); e("s_add_u32 s49, s51, s49")
    e("s_lshl_b32 s51, s49, 11"); e(f"s_add_u32 s51, s51, {KV}")
    e("s_cmp_ge_u32 s25, 2"); e("s_cbranch_scc1 k1_v")
    chain(512,128,False)
    for i in range(4): e(f"v_cvt_pk_bf16_f32 v{48+i}, v{32+2*i}, v{33+2*i}")
    e("buffer_store_dwordx4 v[48:51], v7, s[44:47], s51 offen")
    sumsq(a,48,52,53)
    allred(a,52,53,"v_add_f32",[32]); allred(a,52,53,"v_max_f32",[1,2,4,8,16])
    e("s_lshl_b32 s49, s49, 2"); e(f"s_add_u32 s49, s49, {KMAX}"); e("v_mov_b32 v54, 0")
    e("s_mov_b64 exec, 1"); e("buffer_store_dword v52, v54, s[44:47], s49 offen")
    e("s_endpgm")
    a.label("k1_v")
    chain(512,128,True)
    for i in range(8): e(f"v_cvt_pk_bf16_f32 v{48+i}, v{32+2*i}, v{33+2*i}")
    e("v_and_b32 v8, 15, v0"); e("v_lshrrev_b32 v9, 5, v0"); e("v_lshl_add_u32 v8, v9, 4, v8"); e("v_lshlrev_b32 v8, 4, v8")
    e("s_mov_b32 exec_lo, 0xffff0000"); e("s_mov_b32 exec_hi, 0xffff0000")
    e("buffer_store_dwordx4 v[48:51], v8, s[44:47], s51 offen offset:1024"); e("buffer_store_dwordx4 v[52:55], v8, s[44:47], s51 offen offset:1536")
    e("s_endpgm")
    a.label("k1_xn")
    e("s_sub_u32 s48, s25, 4"); e("s_lshl_b32 s48, s48, 2"); e("s_add_u32 s48, s48, s3"); e("s_sub_u32 s48, s48, 4"); e("s_mul_i32 s49, s48, 4224"); e("s_lshl_b32 s48, s48, 12")
    e("v_add_u32 v8, s49, v15")
    for i in range(4): e(f"ds_read_b128 v[{16+4*i}:{19+4*i}], v8 offset:{1056*i}")
    e("s_lshl_b32 s49, s24, 16"); e("s_add_u32 s48, s48, s49")
    for i in range(4):
        e(f"s_waitcnt lgkmcnt({3-i})"); e(f"buffer_store_dwordx4 v[{16+4*i}:{19+4*i}], v7, s[44:47], s48 offen offset:{1024*i}")
    e("s_endpgm")
    a.label("k1_rfin")
    e("s_cmp_eq_u32 s50, 0"); e("s_cbranch_scc1 k1_end")
    e("s_mov_b32 s48, 0x05040100"); e("s_mov_b32 s49, 0x07060302"); e("s_waitcnt vmcnt(0)")
    e("s_sub_u32 s53, s3, 8"); e("s_lshl_b32 s53, s53, 12"); e("s_add_u32 s53, s53, 149504")
    e("v_and_b32 v8, 7, v0"); e("v_lshrrev_b32 v9, 3, v0"); e("v_xor_b32 v10, v8, v9"); e("v_lshlrev_b32 v10, 4, v10")
    e("v_lshlrev_b32 v9, 2, v9")
    for k in range(8): e(f"ds_bpermute_b32 v{48+k}, v9, v12 offset:{32*k}")
    e("v_and_b32 v11, 31, v0"); e("v_lshlrev_b32 v11, 7, v11"); e("v_lshl_add_u32 v11, v8, 4, v11"); e("v_add_u32 v11, s53, v11")
    e("v_add_u32 v13, s53, v7")
    for c in range(8):
        for p in range(4): e(f"v_perm_b32 v{16+4*c+p}, v{64+4*(2*p+1)+(c>>1)}, v{64+4*(2*p)+(c>>1)}, s{48+(c&1)}")
        e(f"v_xor_b32 v{56+c}, {16*c}, v11")
    e("s_waitcnt lgkmcnt(0)")
    for k in range(8): e(f"v_add_u32 v{48+k}, v{48+k}, v10")
    for r in range(2):
        e(f"s_mov_b32 exec_lo, {-1 if r==0 else 0}"); e(f"s_mov_b32 exec_hi, {0 if r==0 else -1}")
        for c in range(8): e(f"ds_write_b128 v{56+c}, v[{16+4*c}:{19+4*c}]")
        e("s_mov_b64 exec, -1"); e("s_waitcnt lgkmcnt(0)")
        for k in range(4): e(f"ds_read_b128 v[{64+16*r+4*k}:{67+16*r+4*k}], v13 offset:{1024*k}")
        for k in range(4):
            e(f"s_waitcnt lgkmcnt({3-k})"); e(f"buffer_store_dwordx4 v[{64+16*r+4*k}:{67+16*r+4*k}], v{48+4*r+k}, s[44:47], s52 offen")
    stamp(a,5); e("s_waitcnt vmcnt(0)"); stamp(a,7,True); stamp_out(a,8,8,8)
    a.label("k1_end")
    e("s_endpgm")
    return a.text(), 96
```
